```python
import torch

def _softmax(x, axis=-1):
    return torch.softmax(x, dim=axis)
def _gelu(x):
    return torch.nn.functional.gelu(x, approximate="tanh")
def _silu(x):
    return torch.nn.functional.silu(x)
def _sigmoid(x):
    return torch.sigmoid(x)
def _layernorm(x, axis=-1, eps=1e-5):
    m = x.mean(dim=axis, keepdim=True)
    v = x.var(dim=axis, keepdim=True, unbiased=False)
    return (x - m) / torch.sqrt(v + eps)
def _scatter_add(tgt, idx, src, axis=0):
    return tgt.clone().index_add_(axis, idx, src)
def _segment_sum(src, seg, n):
    out = torch.zeros((n,) + src.shape[1:], dtype=src.dtype)
    return out.index_add_(0, seg, src)
def _pad(x, pw):
    flat = tuple(v for pair in reversed(pw) for v in pair)
    return torch.nn.functional.pad(x, flat)

kernel_name = 'concat_heads__mha_block_cached__gqa_block_cached__near_ridge'

def setup_inputs():

    _w = (lambda a: (lambda t: t.to(torch.bfloat16) if t.is_floating_point() else t)(torch.as_tensor(a)))
    def _A_setup():
        B, Sq, D = 8, 112, 1024
        H, Sk, Dh = 32, 512, 128
        return {
            "x": _w((lambda *s: torch.randn(*s, dtype=torch.bfloat16) * 0.8)(B, Sq, D)),
            "k_cache": _w((lambda *s: torch.randn(*s, dtype=torch.bfloat16) * 0.8)(B, H, Sk, Dh)),
            "v_cache": _w((lambda *s: torch.randn(*s, dtype=torch.bfloat16) * 0.05)(B, H, Sk, Dh)),
            "wq": _w((lambda *s: torch.randn(*s, dtype=torch.bfloat16) * 0.8)(D, H * Dh) * (D ** -0.5)),
            "wo": _w((lambda *s: torch.randn(*s, dtype=torch.bfloat16) * 0.05)(H * Dh, D) * ((H * Dh) ** -0.5)),
        }
    _A_in = _A_setup()

    def _B_setup():
        B, Sq, D = 8, 112, 1024
        Hq, Hkv, Sk, Dh = 32, 32, 512, 128
        assert Hq % Hkv == 0, (Hq, Hkv)
        return {
            "x": _w((lambda *s: torch.randn(*s, dtype=torch.bfloat16) * 0.8)(B, Sq, D)),
            "k_cache": _w((lambda *s: torch.randn(*s, dtype=torch.bfloat16) * 0.8)(B, Hkv, Sk, Dh)),
            "v_cache": _w((lambda *s: torch.randn(*s, dtype=torch.bfloat16) * 0.05)(B, Hkv, Sk, Dh)),
            "wq": _w((lambda *s: torch.randn(*s, dtype=torch.bfloat16) * 0.8)(D, Hq * Dh) * (D ** -0.5)),
            "wo": _w((lambda *s: torch.randn(*s, dtype=torch.bfloat16) * 0.05)(Hq * Dh, D) * ((Hq * Dh) ** -0.5)),
        }
    _B_in = _B_setup()

    return {
        "A_x": _A_in["x"],
        "A_k_cache": _A_in["k_cache"],
        "A_v_cache": _A_in["v_cache"],
        "A_wq": _A_in["wq"],
        "A_wo": _A_in["wo"],
        "B_x": _B_in["x"],
        "B_k_cache": _B_in["k_cache"],
        "B_v_cache": _B_in["v_cache"],
        "B_wq": _B_in["wq"],
        "B_wo": _B_in["wo"],
    }

def reference(A_x, A_k_cache, A_v_cache, A_wq, A_wo, B_x, B_k_cache, B_v_cache, B_wq, B_wo):
    def _A_ref(x, k_cache, v_cache, wq, wo):
        B, Sq, D = x.shape
        H, Dh = 32, 128
        q = (lambda x, *d: x.permute(*d))((x @ wq).reshape(B, Sq, H, Dh), 0, 2, 1, 3)
        scores = torch.einsum("bhqd,bhkd->bhqk", q, k_cache) * (Dh ** -0.5)
        p = _softmax(scores, axis=-1)
        o = torch.einsum("bhqk,bhkd->bhqd", p, v_cache)
        return (lambda x, *d: x.permute(*d))(o, 0, 2, 1, 3).reshape(B, Sq, H * Dh) @ wo

    def _B_ref(x, k_cache, v_cache, wq, wo):
        B, Sq, D = x.shape
        Hq, Dh = 32, 128
        Hkv = k_cache.shape[1]
        rep = Hq // Hkv
        q = (lambda x, *d: x.permute(*d))((x @ wq).reshape(B, Sq, Hq, Dh), 0, 2, 1, 3)
        k = (lambda x, n, axis: torch.repeat_interleave(x, n, dim=axis))(k_cache, rep, axis=1)
        v = (lambda x, n, axis: torch.repeat_interleave(x, n, dim=axis))(v_cache, rep, axis=1)
        scores = torch.einsum("bhqd,bhkd->bhqk", q, k) * (Dh ** -0.5)
        p = _softmax(scores, axis=-1)
        o = torch.einsum("bhqk,bhkd->bhqd", p, v)
        return (lambda x, *d: x.permute(*d))(o, 0, 2, 1, 3).reshape(B, Sq, Hq * Dh) @ wo

    a = _A_ref(A_x, A_k_cache, A_v_cache, A_wq, A_wo)
    b = _B_ref(B_x, B_k_cache, B_v_cache, B_wq, B_wo)
    return torch.concatenate([a, b], axis=-1)
```

```python
import re

REG_RE = re.compile(r"(?<![\w.])(-?)(?:abs\()?([vas])(?:\[(\d+):(\d+)\]|(\d+))")
TRANS = ("v_exp_f32", "v_log_f32", "v_rcp_f32", "v_rsq_f32", "v_sqrt_f32", "v_sin_f32", "v_cos_f32")


def regs_of(tok):
    tok = tok.strip()
    out = []
    if tok in ("vcc", "exec", "m0", "scc"):
        return [(tok, 0)]
    if tok in ("vcc_lo", "vcc_hi"):
        return [("vcc", 0)]
    m = REG_RE.fullmatch(tok.rstrip(")")) or REG_RE.match(tok)
    if m:
        k = m.group(2)
        if m.group(3) is not None:
            out = [(k, i) for i in range(int(m.group(3)), int(m.group(4)) + 1)]
        else:
            out = [(k, int(m.group(5)))]
    return out


class I:
    __slots__ = ("text", "op", "rd", "wr", "kind", "unit", "cost", "passes", "srcc", "srcab", "sdata")

    def __init__(self, text, unit=None, cost=None):
        self.text = text
        self.unit = unit
        parts = text.split(None, 1)
        op = self.op = parts[0]
        ops = [t.strip() for t in parts[1].split(",")] if len(parts) > 1 else []
        if ops:
            last = ops[-1].split()
            ops[-1] = last[0] if last else ""
            flags = last[1:]
        else:
            flags = []
        rd, wr = [], []
        self.passes = 0
        self.srcc, self.srcab, self.sdata = [], [], []
        R = lambda idx: [r for i in idx if i < len(ops) for r in regs_of(ops[i])]
        if op.startswith("v_mfma"):
            self.kind = "mfma"
            self.passes = 8 if "32x32" in op else 4
            wr = R([0]); self.srcab = R([1, 2]); self.srcc = R([3]); rd = self.srcab + self.srcc
        elif op.startswith("buffer_load") or op.startswith("global_load"):
            if "lds" in flags:
                self.kind = "dma"; rd = R(range(len(ops))) + [("m0", 0)]
            else:
                self.kind = "vload"; wr = R([0]); rd = R(range(1, len(ops)))
        elif op.startswith("buffer_store") or op.startswith("buffer_atomic"):
            self.kind = "vstore"; rd = R(range(len(ops))); self.sdata = R([0])
            if op.startswith("buffer_atomic") and "sc0" in flags:
                self.kind = "vload"; wr = R([0])
        elif op.startswith("global_store"):
            self.kind = "vstore"; rd = R(range(len(ops))); self.sdata = R([1])
        elif op.startswith("global_atomic"):
            if "sc0" in flags:
                self.kind = "vload"; wr = R([0]); rd = R(range(1, len(ops)))
            else:
                self.kind = "vstore"; rd = R(range(len(ops)))
        elif op in ("buffer_wbl2", "buffer_inv"):
            self.kind = "vstore"
        elif op.startswith("ds_read"):
            self.kind = "dsread"; wr = R([0]); rd = R([1])
        elif op.startswith("ds_write"):
            self.kind = "dswrite"; rd = R(range(len(ops)))
        elif op.startswith("s_load") or op in ("s_memtime", "s_memrealtime"):
            self.kind = "smem"; wr = R([0]); rd = R(range(1, len(ops)))
        elif op.startswith("v_cmp"):
            self.kind = "valu"; wr = R([0]); rd = R([1, 2])
        elif op.startswith("v_permlane") and "swap" in op:
            self.kind = "valu"; wr = R([0, 1]); rd = R([0, 1])
        elif op.startswith("v_fmac") or op.startswith("v_pk_fmac"):
            self.kind = "valu"; wr = R([0]); rd = R(range(len(ops)))
        elif op.startswith("v_cndmask"):
            self.kind = "valu"; wr = R([0]); rd = R(range(1, len(ops)))
        elif op.startswith("v_"):
            self.kind = "valu"; wr = R([0]); rd = R(range(1, len(ops)))
        elif op.startswith("s_cmp"):
            self.kind = "salu"; rd = R([0, 1]); wr = [("scc", 0)]
        elif op.startswith("s_cbranch") or op in ("s_branch", "s_endpgm", "s_barrier", "s_waitcnt", "s_nop",
                                                   "s_setprio", "s_sleep", "s_setpc_b64"):
            self.kind = "ctl"; rd = R(range(len(ops))) if op == "s_setpc_b64" else []
        elif op.endswith(":") or op.startswith("."):
            self.kind = "label"
        elif op.startswith("s_"):
            self.kind = "salu"; wr = R([0]); rd = R(range(1, len(ops)))
            if "saveexec" in op:
                wr += [("exec", 0)]
        else:
            raise ValueError("unknown op " + text)
        self.rd, self.wr = set(rd), set(wr)
        if cost is None:
            cost = 2 if op.startswith(TRANS) else 1
        self.cost = cost

    def __repr__(self):
        return self.text


class Barrier:
    kind = "barrier"

    def __init__(self, landed=(), release=(), bar=True):
        self.landed, self.release, self.bar = list(landed), list(release), bar
        self.cost = 1


class WaitAll:
    kind = "waitall"

    def __init__(self, vm=None, lgkm=None):
        self.vm, self.lgkm = vm, lgkm
        self.cost = 1


class Unit:
    def __init__(self, name, lo, hi, private=False):
        self.name, self.lo, self.hi, self.private = name, lo, hi, private
        self.state = "new"
        self.reads_open = False

    def __repr__(self):
        return f"<{self.name} {self.lo}:{self.hi} {self.state}>"


def weave(mfmas, queues):
    n = len(mfmas)
    gaps = [[] for _ in range(n)]
    for items, g0, g1 in queues:
        if not items:
            continue
        g1 = min(g1, n - 1)
        span = g1 - g0 + 1
        groups = [it if isinstance(it, (list, tuple)) else [it] for it in items]
        total = sum(x.cost for grp in groups for x in grp)
        acc = 0
        for grp in groups:
            g = g0 + min(span - 1, int(acc * span / total))
            gaps[g].extend(grp)
            acc += sum(x.cost for x in grp)
    out = []
    for m, g in zip(mfmas, gaps):
        out.append(m)
        out.extend(g)
    return out


class Stream:
    def __init__(self):
        self.items = []
        self.units = []

    def __call__(self, x, unit=None):
        if isinstance(x, str):
            for line in x.strip().split("\n"):
                line = line.split(";")[0].strip()
                if line:
                    self.items.append(I(line, unit))
        elif isinstance(x, (list, tuple)):
            for y in x:
                self(y)
        else:
            self.items.append(x)

    def unit(self, name, lo, hi, private=False):
        u = Unit(name, lo, hi, private)
        self.units.append(u)
        return u

    def finalize(self, verbose=False):
        out, hist = [], []
        vm, lg = [], []
        pos = 0
        stats = dict(nops=0, nop_states=0, waits=0)
        live_units = []

        def emit(inst, states=1):
            nonlocal pos
            out.append(inst.text)
            if inst.kind == "label":
                return
            hist.append((inst, pos))
            pos += states
            if len(hist) > 40:
                del hist[0]

        def do_wait(nv, nl):
            parts = []
            if nv is not None and nv < len(vm):
                n = min(nv, 63); parts.append(f"vmcnt({n})"); del vm[:len(vm) - n]
            if nl is not None and nl < len(lg):
                if any(o.kind == "smem" for o in lg):
                    nl = 0
                n = min(nl, 15); parts.append(f"lgkmcnt({n})"); del lg[:len(lg) - n]
            if parts:
                emit(I("s_waitcnt " + " ".join(parts)))
                stats["waits"] += 1

        def need(queue, pred):
            idx = [k for k, o in enumerate(queue) if pred(o)]
            return None if not idx else len(queue) - 1 - max(idx)

        def hazard(inst):
            req = 0
            for prev, p in hist:
                d = pos - p - 1
                r = 0
                pw = prev.wr
                if prev.kind == "valu":
                    vw = {x for x in pw if x[0] in "va" and x[0] != "vcc"}
                    sw = {x for x in pw if x[0] in ("s", "vcc")}
                    if inst.kind == "mfma" and vw & inst.rd: r = max(r, 2)
                    if inst.kind == "valu":
                        if prev.op.startswith(TRANS) and vw & inst.rd and not inst.op.startswith(TRANS): r = max(r, 1)
                        if inst.op.startswith("v_permlane") and vw & inst.rd: r = max(r, 2)
                        if inst.op.startswith(("v_readlane", "v_readfirstlane")) and vw & inst.rd: r = max(r, 1)
                        if "dpp" in inst.text and vw & inst.rd: r = max(r, 2)
                        if sw & inst.rd: r = max(r, 2)
                        if inst.op.startswith("v_cndmask") and ("vcc", 0) in sw: r = max(r, 2)
                    if inst.kind in ("dma", "vload", "vstore") and sw & inst.rd: r = max(r, 5)
                    if ("exec", 0) in pw and inst.kind == "mfma": r = max(r, 4)
                if prev.kind == "salu" and ("m0", 0) in pw and inst.kind == "dma": r = max(r, 1)
                if prev.kind == "mfma":
                    long = {4: 8, 8: 12}[prev.passes]
                    if inst.kind == "mfma":
                        if pw & set(inst.srcab): r = max(r, long)
                        c = set(inst.srcc)
                        if pw & c and not (pw == c and prev.passes == inst.passes): r = max(r, long - 2)
                        if pw & inst.wr and not (pw & c): r = max(r, long)
                    elif inst.kind in ("valu", "dsread", "vload"):
                        if pw & (inst.rd | inst.wr): r = max(r, long)
                    elif inst.kind in ("vstore", "dswrite", "dma"):
                        if pw & inst.rd: r = max(r, long)
                    if inst.kind == "valu" and set(prev.srcc) & inst.wr: r = max(r, {4: 3, 8: 7}[prev.passes])
                if prev.kind == "vstore" and len(prev.sdata) >= 3 and set(prev.sdata) & inst.wr:
                    r = max(r, 2 if inst.kind == "valu" else 1)
                req = max(req, r - d)
            return req

        for it in self.items:
            if it.kind == "waitall":
                do_wait(it.vm, it.lgkm)
                continue
            if it.kind == "barrier":
                nv = need(vm, lambda o: o.unit in it.landed)
                nl = need(lg, lambda o: o.unit in it.landed or o.unit in it.release)
                do_wait(nv, nl)
                if it.bar:
                    emit(I("s_barrier"))
                for u in it.landed:
                    assert u.state == "filling", ("landed", u)
                    u.state = "visible"
                for u in it.release:
                    assert u.state == "visible", ("release", u)
                    u.state = "released"
                continue
            if it.kind == "label":
                emit(it)
                continue
            touch = it.rd | it.wr
            nv = need(vm, lambda o: o.kind == "vload" and o.wr & touch)
            nl = need(lg, lambda o: o.kind in ("dsread", "smem") and o.wr & touch)
            do_wait(nv, nl)
            h = hazard(it)
            while h > 0:
                k = min(h, 16)
                emit(I(f"s_nop {k - 1}"), k)
                stats["nops"] += 1; stats["nop_states"] += k
                h -= k
            u = it.unit
            if u is not None:
                if it.kind in ("dma", "dswrite", "vstore"):
                    if u.state == "new":
                        for o in live_units:
                            if o is not u and o.lo < u.hi and u.lo < o.hi:
                                assert o.state == "released", ("overwrite", u, o)
                        live_units[:] = [o for o in live_units if o.state != "released" or not (o.lo < u.hi and u.lo < o.hi)]
                        live_units.append(u)
                        u.state = "filling"
                    assert u.state == "filling", ("fill", u, it.text)
                elif it.kind == "dsread":
                    assert u.state == "visible", ("read", u, it.text)
            if it.op == "s_waitcnt":
                m = re.search(r"vmcnt\((\d+)\)", it.text)
                if m and int(m.group(1)) < len(vm): del vm[:len(vm) - int(m.group(1))]
                m = re.search(r"lgkmcnt\((\d+)\)", it.text)
                if m and int(m.group(1)) < len(lg): del lg[:len(lg) - int(m.group(1))]
            m = re.fullmatch(r"s_nop (\d+)", it.text)
            emit(it, int(m.group(1)) + 1 if m else 1)
            if it.kind in ("dma", "vload", "vstore"):
                vm.append(it)
            elif it.kind in ("dsread", "dswrite", "smem"):
                lg.append(it)
        if verbose:
            print("finalize:", stats, "instructions", len(out))
        return out
```

```python
import sys
from asmgen import Stream, I, Barrier, WaitAll, weave

NAME = "concat_heads__mha_block_cached__gqa_block_cached__near_ridge"

O_GROUP = 458752
WS_O = 0
WS_PART = 16 << 20
PART_CU = 114688
WS_STAMP = 128 << 20

L_XA, L_XB, L_W = 73728, 73728 + 24576, 73728 + 24576 + 32768
L_Q = 73728
XA_SLOT, XB_SLOT, W_SLOT = 12288, 16384, 16384

S_X, S_W, S_K, S_V, S_O, S_P = 8, 12, 16, 20, 24, 44
sXo, sWo, sWave, sM_KV, sM_XA, sM_XB, sKVo, sC = 28, 29, 30, 31, 32, 33, 34, 35
sFlag, sTmp, sLink = 36, 38, 40
sBr, sOct, sHH, sBP, sT0, sT1, sT2, sT3 = 48, 49, 50, 51, 52, 53, 54, 55
sOo = 56
S_ST = 60
sSt = 90

ACC, XA, XB = 0, 112, 136
vLane, vT0, vT1, vT2, vT3, vSt, vStD = 168, 169, 170, 171, 172, 173, 174
vOXA, vOXB, vOW = 176, 179, 183
vXA, vXB, vWa = 187, 189, 191
vOK, vOV, vOO = 195, 197, 198
vM, vMC, vThr, vTM, vF, vL0, vL1 = 199, 200, 201, 202, 203, 204, 205
vKa, vVa = 208, 232
vQ = 244
SB, PB, KF, VF = 0, 32, 48, 80
aO, aQ = 0, 128

SCALE_C = 0.12751743
THR_RAW = 8.0 / SCALE_C


def f32(x):
    import struct
    return "0x%08x" % struct.unpack("<I", struct.pack("<f", x))[0]


class Opt:
    stamps = False
    kv_nt = True
    w_nt = False
    x_nt = False
    o_store = ""
    pre_stages = (4, 5, 6, 7, 8, 9, 10, 11, 12)
    pretouch = True
    rot = True


def srd(S, r, ptr, off_sreg, size):
    if off_sreg is None:
        S(f"s_mov_b32 s{r}, s{ptr}\ns_mov_b32 s{r+1}, s{ptr+1}")
    else:
        S(f"s_add_u32 s{r}, s{ptr}, s{off_sreg}\ns_addc_u32 s{r+1}, s{ptr+1}, 0")
    S(f"s_mov_b32 s{r+2}, {size}\ns_mov_b32 s{r+3}, 0x20000")


def stamp(S, o, idx):
    if not o.stamps:
        return
    S(f"s_memtime s[{sSt}:{sSt+1}]")
    S(WaitAll(lgkm=0))
    S(f"v_mov_b32 v{vStD}, s{sSt}")
    S(f"buffer_store_dword v{vStD}, v{vSt}, s[{S_ST}:{S_ST+3}], 0 offen offset:{idx * 4}")


def header(S, o, kname, code_bytes):
    S(f"s_cmp_ge_u32 s2, 256\ns_cbranch_scc1 L_end_{kname}")
    S("s_load_dwordx16 s[64:79], s[0:1], 0\ns_load_dwordx8 s[80:87], s[0:1], 64\ns_load_dwordx2 s[88:89], s[0:1], 96")
    if o.pretouch and code_bytes:
        per = (code_bytes // 32 + 127) // 128 * 128
        S(f"s_getpc_b64 s[{sTmp}:{sTmp+1}]")
        S(f"s_and_b32 s{sTmp}, s{sTmp}, 0xffffff00")
        S(f"s_lshr_b32 s{sT0}, s2, 3\ns_mul_i32 s{sT0}, s{sT0}, {per}")
        S(f"v_lshlrev_b32 v{vT0}, 6, v0\nv_min_u32 v{vT0}, {per - 64}, v{vT0}\nv_add_u32 v{vT0}, s{sT0}, v{vT0}")
        S(f"v_min_u32 v{vT0}, {code_bytes - 64}, v{vT0}")
        S(f"global_load_dword v{vT1}, v{vT0}, s[{sTmp}:{sTmp+1}]")
    S(f"v_and_b32 v{vLane}, 63, v0\nv_lshrrev_b32 v{vT0}, 6, v0\ns_nop 0\nv_readfirstlane_b32 s{sWave}, v{vT0}")
    S(f"s_and_b32 s{sOct}, s2, 3\ns_bfe_u32 s{sBr}, s2, 0x10002\ns_bfe_u32 s{sHH}, s2, 0x30003\ns_lshr_b32 s{sBP}, s2, 6")
    S(f"s_lshl_b32 s{sM_KV}, s{sWave}, 11\ns_mul_i32 s{sM_XA}, s{sWave}, 3072\ns_lshl_b32 s{sM_XB}, s{sWave}, 12")
    S(WaitAll(lgkm=0))
    S(f"s_cmp_eq_u32 s{sBr}, 0")
    for k in range(5):
        S(f"s_cselect_b64 s[{64+2*k}:{65+2*k}], s[{64+2*k}:{65+2*k}], s[{74+2*k}:{75+2*k}]")
    if o.stamps:
        S(f"s_lshl_b32 s{sT0}, s2, 10\ns_lshl_b32 s{sT1}, s{sWave}, 8\ns_add_u32 s{sT0}, s{sT0}, s{sT1}")
        S(f"s_add_u32 s{sT0}, s{sT0}, {WS_STAMP + {'k1': 0, 'k2': 1 << 20, 'k3': 2 << 20}[kname]}")
        srd(S, S_ST, 88, sT0, 256)
        S(f"v_lshlrev_b32 v{vSt}, 8, v{vLane}")


def rot_offsets(S, o, xmul, wmul):
    if o.rot:
        S(f"s_lshl_b32 s{sT0}, s{sBP}, 1\ns_add_u32 s{sT0}, s{sT0}, s{sHH}\ns_and_b32 s{sT0}, s{sT0}, 7\ns_lshl_b32 s{sT0}, s{sT0}, 1")
    else:
        S(f"s_mov_b32 s{sT0}, 0")
    S(f"s_mul_i32 s{sXo}, s{sT0}, {xmul}\ns_mul_i32 s{sWo}, s{sT0}, {wmul}")


def gemm_addresses(S, kind):
    wstride = 8192 if kind == "q" else 2048
    S(f"s_lshr_b32 s{sT0}, s{sWave}, 1\ns_and_b32 s{sT1}, s{sWave}, 1")
    if kind == "q":
        S(f"v_lshrrev_b32 v{vT0}, 3, v{vLane}\nv_lshrrev_b32 v{vT1}, 4, v{vLane}\nv_and_b32 v{vT2}, 7, v{vLane}")
        for base, n, row0 in ((vOXA, 3, 0), (vOXB, 4, 48)):
            for p in range(n):
                S(f"s_mul_i32 s{sT2}, s{sT1}, {n}\ns_add_u32 s{sT2}, s{sT2}, {p}")
                S(f"s_lshl_b32 s{sT3}, s{sT2}, 2\ns_and_b32 s{sT3}, s{sT3}, 4")
                S(f"v_add_u32 v{vT3}, s{sT3}, v{vT1}\nv_xor_b32 v{vT3}, v{vT3}, v{vT2}\nv_lshlrev_b32 v{vT3}, 4, v{vT3}")
                S(f"s_lshl_b32 s{sT2}, s{sT2}, 3\ns_mul_i32 s{sT3}, s{sT0}, 112\ns_add_u32 s{sT2}, s{sT2}, s{sT3}")
                S(f"s_add_u32 s{sT2}, s{sT2}, {row0}\ns_lshl_b32 s{sT2}, s{sT2}, 11\ns_sub_u32 s{sT2}, s{sT2}, {1024 * p}")
                S(f"v_lshl_add_u32 v{vT3}, v{vT0}, 11, v{vT3}\nv_add_u32 v{base + p}, s{sT2}, v{vT3}")
        S(f"v_and_b32 v{vT0}, 15, v{vLane}\nv_lshrrev_b32 v{vT2}, 1, v{vT0}\nv_xor_b32 v{vT2}, v{vT2}, v{vT1}")
        S(f"v_lshlrev_b32 v{vT2}, 4, v{vT2}\nv_lshl_add_u32 v{vT2}, v{vT0}, 7, v{vT2}\nv_xor_b32 v{vT3}, 64, v{vT2}")
        S(f"s_mul_i32 s{sT2}, s{sT0}, 6144\ns_add_u32 s{sT2}, s{sT2}, {L_XA}")
        S(f"v_add_u32 v{vXA}, s{sT2}, v{vT2}\nv_add_u32 v{vXA+1}, s{sT2}, v{vT3}")
        S(f"s_lshl_b32 s{sT2}, s{sT0}, 13\ns_add_u32 s{sT2}, s{sT2}, {L_XB}")
        S(f"v_add_u32 v{vXB}, s{sT2}, v{vT2}\nv_add_u32 v{vXB+1}, s{sT2}, v{vT3}")
    else:
        S(f"v_lshlrev_b32 v{vT0}, 4, v{vLane}")
        S(f"s_mul_i32 s{sT2}, s{sT0}, 14336\ns_mul_i32 s{sT3}, s{sT1}, 3072\ns_add_u32 s{sT3}, s{sT3}, s{sT2}")
        S(f"v_add_u32 v{vOXA}, s{sT3}, v{vT0}")
        S(f"s_lshl_b32 s{sT3}, s{sT1}, 12\ns_add_u32 s{sT3}, s{sT3}, s{sT2}\ns_add_u32 s{sT3}, s{sT3}, 6144")
        S(f"v_add_u32 v{vOXB}, s{sT3}, v{vT0}")
        S(f"s_mul_i32 s{sT2}, s{sT0}, 6144\ns_add_u32 s{sT2}, s{sT2}, {L_XA}\nv_add_u32 v{vXA}, s{sT2}, v{vT0}")
        S(f"s_lshl_b32 s{sT2}, s{sT0}, 13\ns_add_u32 s{sT2}, s{sT2}, {L_XB}\nv_add_u32 v{vXB}, s{sT2}, v{vT0}")
    S(f"v_lshrrev_b32 v{vT0}, 4, v{vLane}\nv_bfe_u32 v{vT1}, v{vLane}, 1, 3\nv_and_b32 v{vT2}, 1, v{vLane}")
    for p in range(4):
        hb = ((p >> 1) & 1) if kind == "q" else (p & 1)
        S(f"v_xor_b32 v{vT3}, v{vT1}, v{vT0}")
        if hb:
            S(f"v_xor_b32 v{vT3}, 4, v{vT3}")
        S(f"v_lshl_add_u32 v{vT3}, v{vT3}, 1, v{vT2}\nv_lshlrev_b32 v{vT3}, 4, v{vT3}")
        S(f"s_lshl_b32 s{sT2}, s{sWave}, 4\ns_add_u32 s{sT2}, s{sT2}, {4 * p}\ns_mul_i32 s{sT2}, s{sT2}, {wstride}")
        S(f"s_sub_u32 s{sT2}, s{sT2}, {1024 * p}")
        S(f"v_lshl_add_u32 v{vT3}, v{vT0}, {13 if kind == 'q' else 11}, v{vT3}\nv_add_u32 v{vOW + p}, s{sT2}, v{vT3}")
    S(f"v_bfe_u32 v{vT1}, v{vLane}, 2, 2\nv_bfe_u32 v{vT2}, v{vLane}, 4, 1")
    if kind == "q":
        S(f"v_lshl_add_u32 v{vT0}, v{vT0}, 3, v{vT1}")
    else:
        S(f"v_lshrrev_b32 v{vT0}, 5, v{vLane}\nv_lshlrev_b32 v{vT0}, 4, v{vT0}\nv_lshl_add_u32 v{vT0}, v{vT2}, 2, v{vT0}")
        S(f"v_add_u32 v{vT0}, v{vT0}, v{vT1}")
    S(f"v_lshl_add_u32 v{vT1}, v{vT2}, 2, v{vT1}")
    S(f"v_and_b32 v{vT2}, 3, v{vLane}\nv_lshlrev_b32 v{vT2}, 3, v{vT2}\nv_lshl_add_u32 v{vT2}, v{vT0}, 8, v{vT2}")
    S(f"v_add_u32 v{vT2}, {L_W}, v{vT2}")
    for i in range(4):
        S(f"s_lshl_b32 s{sT2}, s{sT1}, 2\ns_add_u32 s{sT2}, s{sT2}, {i}")
        S(f"v_xor_b32 v{vT3}, s{sT2}, v{vT1}\nv_lshl_add_u32 v{vWa + i}, v{vT3}, 5, v{vT2}")


def gemm(S, o, kind, extra_dma=None):
    xstep, xwrap = (128, 2048) if kind == "q" else (28672, 458752)
    wstep = 64 * (8192 if kind == "q" else 2048)
    xfl = " nt" if o.x_nt else ""
    wfl = " nt" if o.w_nt else ""
    uXA = [S.unit(f"{kind}XA{s}", L_XA + (s & 1) * XA_SLOT, L_XA + ((s & 1) + 1) * XA_SLOT) for s in range(16)]
    uXB = [S.unit(f"{kind}XB{s}", L_XB + (s & 1) * XB_SLOT, L_XB + ((s & 1) + 1) * XB_SLOT) for s in range(16)]
    uW = [S.unit(f"{kind}W{s}", L_W + (s & 1) * W_SLOT, L_W + ((s & 1) + 1) * W_SLOT) for s in range(16)]

    def dma(unit, mreg, voff, same, n, srdr, soff, fl):
        items = []
        for p in range(n):
            grp = []
            if p == 0:
                grp.append(I(f"s_add_u32 m0, s{mreg}, {unit.lo}"))
                grp.append(I("s_nop 0"))
            v = voff if same else voff + p
            off = f" offset:{1024 * p}" if p else ""
            grp.append(I(f"buffer_load_dwordx4 v{v}, s[{srdr}:{srdr+3}], s{soff} offen{off}{fl} lds", unit, cost=3))
            items.append(grp)
        return items

    same = kind != "q"
    dW = lambda s: dma(uW[s], sM_XB, vOW, False, 4, S_W, sWo, wfl)
    dXA = lambda s: dma(uXA[s], sM_XA, vOXA, same, 3, S_X, sXo, xfl)
    dXB = lambda s: dma(uXB[s], sM_XB, vOXB, same, 4, S_X, sXo, xfl)

    def advance():
        if kind == "q":
            return [I(f"s_add_u32 s{sXo}, s{sXo}, {xstep}"), I(f"s_and_b32 s{sXo}, s{sXo}, {xwrap - 1}"),
                    I(f"s_lshl_b32 s{sWo}, s{sXo}, 12")]
        return [I(f"s_add_u32 s{sXo}, s{sXo}, {xstep}"), I(f"s_add_u32 s{sWo}, s{sWo}, {wstep}"),
                I(f"s_cmp_eq_u32 s{sXo}, {xwrap}"), I(f"s_cselect_b32 s{sXo}, 0, s{sXo}"),
                I(f"s_cselect_b32 s{sWo}, 0, s{sWo}")]

    def wreg(s, ks, i):
        return (s & 1) * 32 + (ks * 4 + i) * 4

    def rW(s):
        sec = 1024 if kind == "q" else 2048
        out = []
        for ks in range(2):
            for i in range(4):
                a = wreg(s, ks, i)
                for h in range(2):
                    out.append(I(f"ds_read_b64_tr_b16 a[{a+2*h}:{a+2*h+1}], v{vWa+i} offset:{(s & 1) * W_SLOT + ks * 8192 + h * sec}", uW[s]))
        return out

    def rX(s, lo, hi):
        out = []
        for j in range(lo, hi):
            for ks in range(2):
                if j < 3:
                    r, base, off, u = XA + (j * 2 + ks) * 4, vXA, (s & 1) * XA_SLOT + j * 2048, uXA[s]
                else:
                    r, base, off, u = XB + ((j - 3) * 2 + ks) * 4, vXB, (s & 1) * XB_SLOT + (j - 3) * 2048, uXB[s]
                if kind == "q":
                    base += ks
                else:
                    off += ks * 1024
                out.append(I(f"ds_read_b128 v[{r}:{r+3}], v{base} offset:{off}", u))
        return out

    def mf(s, lo, hi):
        out = []
        for j in range(lo, hi):
            for ks in range(2):
                xr = (XA + (j * 2 + ks) * 4) if j < 3 else (XB + ((j - 3) * 2 + ks) * 4)
                for i in range(4):
                    c = ACC + (j * 4 + i) * 4
                    a = wreg(s, ks, i)
                    src = "0" if (s == 0 and ks == 0) else f"v[{c}:{c+3}]"
                    out.append(I(f"v_mfma_f32_16x16x32_bf16 v[{c}:{c+3}], a[{a}:{a+3}], v[{xr}:{xr+3}], {src}"))
        return out

    for s in range(2):
        S(dW(s)); S(dXA(s)); S(dXB(s)); S(advance())
    S(Barrier(landed=[uW[0], uXA[0]]))
    S(rW(0)); S(rX(0, 0, 3))
    for s in range(16):
        S(Barrier(landed=[uXB[s]], release=[uW[s], uXA[s]]))
        q = [(rX(s, 3, 7), 0, 15)]
        if s + 2 < 16:
            q.append((dW(s + 2) + dXA(s + 2), 0, 21))
        S(weave(mf(s, 0, 3), q))
        S(Barrier(landed=[uW[s + 1], uXA[s + 1]] if s + 1 < 16 else [], release=[uXB[s]]))
        q = []
        if s + 1 < 16:
            q.append((rW(s + 1) + rX(s + 1, 0, 3), 0, 25))
        d = []
        if s + 2 < 16:
            d += dXB(s + 2) + advance()
        if extra_dma:
            d += extra_dma(s)
        q.append((d, 0, 28))
        S(weave(mf(s, 3, 7), q))


class Ring:
    def __init__(self, S, o):
        self.S, self.o = S, o
        seq = [("K", 0), ("K", 1), ("K", 2)]
        for t in range(30):
            seq.append(("V", t))
            if t + 3 < 32:
                seq.append(("K", t + 3))
        seq += [("V", 30), ("V", 31)]
        self.seq, self.next = seq, 0
        self.free = list(range(9))
        self.unit, self.slot = {}, {}

    def issue(self, maxn=99):
        items = []
        while self.free and self.next < len(self.seq) and maxn > 0:
            maxn -= 1
            key = self.seq[self.next]; self.next += 1
            sl = self.free.pop(0)
            u = self.S.unit(f"{key[0]}{key[1]}", sl * 8192, sl * 8192 + 8192)
            self.unit[key], self.slot[key] = u, sl
            t = key[1]
            off = (t >> 4) * 4194304 + (t & 15) * 8192
            fl = " nt" if self.o.kv_nt else ""
            r = S_K if key[0] == "K" else S_V
            v0, v1 = (vOK, vOK + 1) if key[0] == "K" else (vOV, vOV)
            items.append([I(f"s_add_u32 m0, s{sM_KV}, {sl * 8192}"), I(f"s_mov_b32 s{sKVo}, {off}"),
                          I(f"buffer_load_dwordx4 v{v0}, s[{r}:{r+3}], s{sKVo} offen{fl} lds", u, cost=3)])
            items.append([I(f"buffer_load_dwordx4 v{v1}, s[{r}:{r+3}], s{sKVo} offen offset:1024{fl} lds", u, cost=3)])
        return items

    def release(self, keys):
        for k in keys:
            self.free.append(self.slot[k])

    def rK(self, t):
        sl, u = self.slot[("K", t)], self.unit[("K", t)]
        return [I(f"ds_read_b128 v[{KF+4*s}:{KF+4*s+3}], v{vKa + (sl >> 3) * 8 + s} offset:{(sl & 7) * 8192}", u) for s in range(8)]

    def rV(self, t):
        sl, u = self.slot[("V", t)], self.unit[("V", t)]
        out = []
        for hh in range(2):
            for uu in range(4):
                r = VF + (hh * 4 + uu) * 4
                for sec in range(2):
                    out.append(I(f"ds_read_b64_tr_b16 v[{r+2*sec}:{r+2*sec+1}], v{vVa + (sl >> 3) * 4 + uu} "
                                 f"offset:{(sl & 7) * 8192 + hh * 4096 + sec * 2048}", u))
        return out


def kv_addresses(S):
    S(f"v_lshrrev_b32 v{vT0}, 4, v{vLane}\nv_and_b32 v{vT1}, 15, v{vLane}\ns_lshl_b32 s{sT0}, s{sWave}, 3")
    S(f"v_add_u32 v{vT2}, s{sT0}, v{vT0}")
    for p in range(2):
        S(f"v_add_u32 v{vT3}, {4 * p}, v{vT2}\nv_and_b32 v{vT3}, 15, v{vT3}\nv_xor_b32 v{vT3}, v{vT3}, v{vT1}")
        S(f"v_lshlrev_b32 v{vT3}, 4, v{vT3}\nv_lshl_add_u32 v{vOK + p}, v{vT2}, 8, v{vT3}")
    S(f"v_lshlrev_b32 v{vT3}, 2, v{vT0}\nv_xor_b32 v{vT3}, v{vT3}, v{vT1}\nv_lshlrev_b32 v{vT3}, 4, v{vT3}")
    S(f"v_lshl_add_u32 v{vOV}, v{vT2}, 8, v{vT3}")
    S(f"v_and_b32 v{vT2}, 31, v{vLane}\nv_lshrrev_b32 v{vT3}, 5, v{vLane}\nv_xor_b32 v{vT3}, v{vT3}, v{vT1}")
    S(f"v_lshlrev_b32 v{vT3}, 4, v{vT3}\nv_lshl_add_u32 v{vKa}, v{vT2}, 8, v{vT3}")
    for s in range(1, 8):
        S(f"v_xor_b32 v{vKa + s}, {32 * s}, v{vKa}")
    for st in range(1, 3):
        for s in range(8):
            S(f"v_add_u32 v{vKa + st * 8 + s}, {st * 65536}, v{vKa + s}")
    S(f"v_bfe_u32 v{vT0}, v{vLane}, 2, 2\nv_lshrrev_b32 v{vT1}, 5, v{vLane}\nv_lshl_add_u32 v{vT1}, v{vT1}, 2, v{vT0}")
    S(f"v_bfe_u32 v{vT2}, v{vLane}, 4, 1\nv_lshlrev_b32 v{vT2}, 5, v{vT2}\nv_lshl_add_u32 v{vT2}, v{vT1}, 8, v{vT2}")
    S(f"v_and_b32 v{vT3}, 3, v{vLane}\nv_lshl_add_u32 v{vT2}, v{vT3}, 3, v{vT2}\nv_lshl_add_u32 v{vVa}, v{vT0}, 6, v{vT2}")
    for u in range(1, 4):
        S(f"v_xor_b32 v{vVa + u}, {64 * u}, v{vVa}")
    for st in range(1, 3):
        for u in range(4):
            S(f"v_add_u32 v{vVa + st * 4 + u}, {st * 65536}, v{vVa + u}")
    S(f"v_bfe_u32 v{vT0}, v{vLane}, 4, 1\ns_lshl_b32 s{sT0}, s{sWave}, 1\nv_add_u32 v{vT0}, s{sT0}, v{vT0}")
    S(f"v_lshrrev_b32 v{vT1}, 5, v{vLane}\nv_and_b32 v{vT2}, 15, v{vLane}\nv_lshl_add_u32 v{vT1}, v{vT1}, 4, v{vT2}")
    S(f"v_lshlrev_b32 v{vT1}, 4, v{vT1}\nv_lshl_add_u32 v{vOO}, v{vT0}, 11, v{vT1}")
    S(f"v_cmp_eq_u32 vcc, 7, v{vT0}\nv_mov_b32 v{vT1}, 0x40000000\nv_cndmask_b32 v{vOO}, v{vOO}, v{vT1}, vcc")
    for k, val in enumerate((0, 28672, 14336, 14336 + 28672)):
        S(f"s_mov_b32 s{sOo + k}, {val}")


def q_exchange(S, ring):
    uQ = S.unit("Q", L_Q, L_Q + 57344)
    S(f"s_lshr_b32 s{sT0}, s{sWave}, 1\ns_and_b32 s{sT1}, s{sWave}, 1\ns_mul_i32 s{sT0}, s{sT0}, 28672\ns_add_u32 s{sT0}, s{sT0}, {L_Q}")
    S(f"v_and_b32 v{vT0}, 15, v{vLane}\nv_lshrrev_b32 v{vT1}, 5, v{vLane}\nv_bfe_u32 v{vT2}, v{vLane}, 4, 1")
    S(f"v_lshlrev_b32 v{vT2}, 3, v{vT2}\nv_lshl_add_u32 v{vT2}, v{vT0}, 8, v{vT2}\nv_add_u32 v{vT2}, s{sT0}, v{vT2}")
    S(f"s_lshl_b32 s{sT1}, s{sT1}, 3\nv_add_u32 v{vT1}, s{sT1}, v{vT1}\nv_xor_b32 v{vT1}, v{vT1}, v{vT0}")
    for i in range(4):
        S(f"v_xor_b32 v{vT3}, {2 * i}, v{vT1}\nv_lshl_add_u32 v{vQ + i}, v{vT3}, 4, v{vT2}")
    for j in range(7):
        for i in range(4):
            c = ACC + (j * 4 + i) * 4
            S(f"v_cvt_pk_bf16_f32 v{c}, v{c}, v{c+1}\nv_cvt_pk_bf16_f32 v{c+1}, v{c+2}, v{c+3}")
            S(I(f"ds_write_b64 v{vQ + i}, v[{c}:{c+1}] offset:{j * 4096}", uQ))
    S(f"v_bfe_u32 v{vT0}, v{vLane}, 4, 1\ns_lshl_b32 s{sT0}, s{sWave}, 1\nv_add_u32 v{vT0}, s{sT0}, v{vT0}")
    S(f"s_lshl_b32 s{sT0}, s{sWave}, 13\ns_add_u32 s{sT0}, s{sT0}, {L_Q}\nv_mov_b32 v{vT1}, s{sT0}")
    S(f"v_subrev_u32 v{vT2}, 4096, v{vT1}\nv_cmp_eq_u32 vcc, 7, v{vT0}\nv_cndmask_b32 v{vT1}, v{vT1}, v{vT2}, vcc")
    S(Barrier(landed=[uQ]))
    for s in range(8):
        S(f"v_add_u32 v{vQ + s}, v{vT1}, v{vKa + s}")
    for t in range(2):
        for s in range(8):
            a = aQ + t * 32 + s * 4
            S(I(f"ds_read_b128 a[{a}:{a+3}], v{vQ + s} offset:{t * 28672}", uQ))
    return uQ


def attention(S, o, ring, uQ, stubs):
    def qk(t):
        b, qb = SB + (t & 1) * 16, aQ + (t >> 4) * 32
        return [I(f"v_mfma_f32_32x32x16_bf16 v[{b}:{b+15}], v[{KF+4*s}:{KF+4*s+3}], a[{qb+4*s}:{qb+4*s+3}], "
                  + ("0" if s == 0 else f"v[{b}:{b+15}]")) for s in range(8)]

    def pv(t):
        pb, ob = PB + (t & 1) * 8, aO + (t >> 4) * 64
        out = []
        for hh in range(2):
            for uu in range(4):
                r, c = VF + (hh * 4 + uu) * 4, ob + uu * 16
                src = "0" if ((t & 15) == 0 and hh == 0) else f"a[{c}:{c+15}]"
                out.append(I(f"v_mfma_f32_32x32x16_bf16 a[{c}:{c+15}], v[{r}:{r+3}], v[{pb+4*hh}:{pb+4*hh+3}], {src}"))
        return out

    def softmax(t):
        b, pb, l = SB + (t & 1) * 16, PB + (t & 1) * 8, (vL0 if t < 16 else vL1)
        out = []
        F = lambda r: I(f"v_fma_f32 v{b+r}, v{b+r}, s{sC}, -v{vMC}")
        E = lambda r: I(f"v_exp_f32 v{b+r}, v{b+r}")
        A = lambda r: I(f"v_add_f32 v{l}, v{l}, v{b+r}")
        C = lambda r: I(f"v_cvt_pk_bf16_f32 v{pb + r // 2}, v{b+r}, v{b+r+1}")
        for k in range(10):
            if k < 8:
                out += [F(2 * k), F(2 * k + 1)]
            if 1 <= k <= 8:
                out += [E(2 * k - 2), E(2 * k - 1)]
            if k >= 2:
                out += [A(2 * k - 4), A(2 * k - 3), C(2 * k - 4)]
        return out

    def tmax(t):
        b = SB + (t & 1) * 16
        out = [I(f"v_max3_f32 v{vTM}, v{b}, v{b+1}, v{b+2}")]
        for r in range(3, 15, 2):
            out.append(I(f"v_max3_f32 v{vTM}, v{vTM}, v{b+r}, v{b+r+1}"))
        out.append(I(f"v_max_f32 v{vTM}, v{vTM}, v{b+15}"))
        return out

    def init_max(t):
        l = vL0 if t < 16 else vL1
        S(f"v_mov_b32 v{vT0}, v{vTM}\nv_mov_b32 v{l}, 0\nv_permlane32_swap_b32 v{vT0}, v{vTM}")
        S(f"v_max_f32 v{vM}, v{vT0}, v{vTM}\nv_mul_f32 v{vMC}, s{sC}, v{vM}\nv_add_f32 v{vThr}, {f32(THR_RAW)}, v{vM}")

    def check(t_next, oset, do_max):
        n = len(stubs)
        if do_max:
            S(f"v_cmp_gt_f32 vcc, v{vTM}, v{vThr}")
            S(f"s_or_b64 s[{sTmp}:{sTmp+1}], vcc, s[{sFlag}:{sFlag+1}]")
        else:
            S(f"s_mov_b64 vcc, 0\ns_or_b64 s[{sTmp}:{sTmp+1}], vcc, s[{sFlag}:{sFlag+1}]")
        S(f"s_cbranch_scc1 L_stub{n}\nL_back{n}:")
        stubs.append((n, oset))

    def epilogue(task):
        l, ob = (vL0, vL1)[task], aO + task * 64
        T = 112
        S(f"v_mov_b32 v{vT0}, v{l}\ns_nop 1\nv_permlane32_swap_b32 v{vT0}, v{l}\nv_add_f32 v{vT0}, v{vT0}, v{l}\nv_rcp_f32 v{vT0}, v{vT0}")
        fl = f" {o.o_store}" if o.o_store else ""
        for uu in range(4):
            for a in range(2):
                tb = T + ((uu * 2 + a) & 1) * 12
                for j in range(8):
                    S(f"v_accvgpr_read_b32 v{tb + j}, a{ob + uu * 16 + a * 8 + j}")
                for j in range(8):
                    S(f"v_mul_f32 v{tb + j}, v{vT0}, v{tb + j}")
                for j in range(4):
                    S(f"v_cvt_pk_bf16_f32 v{tb + 8 + j}, v{tb + 2*j}, v{tb + 2*j + 1}")
                S(f"buffer_store_dwordx4 v[{tb+8}:{tb+11}], v{vOO}, s[{S_O}:{S_O+3}], s{sOo + task * 2 + (uu >> 1)} offen "
                  f"offset:{(uu & 1) * 1024 + a * 512}{fl}")

    U = lambda k, t: ring.unit[(k, t)]
    S(f"s_mov_b32 s{sC}, {f32(SCALE_C)}\ns_mov_b64 s[{sFlag}:{sFlag+1}], 0")
    S(Barrier(landed=[U("K", 0), U("K", 1)], release=[uQ]))
    ring.free += list(range(9, 20))
    S(ring.rK(0))
    S(ring.issue(4))
    S(qk(0))
    S(ring.rK(1))
    S(ring.issue())
    S(tmax(0))
    init_max(0)
    for t in range(33):
        landed, release = [], []
        if 1 <= t: landed.append(("V", t - 1))
        if t + 2 < 32: landed.append(("K", t + 2))
        if t >= 2: release.append(("V", t - 2))
        if t == 0: release.append(("K", 0))
        if t + 1 < 32: release.append(("K", t + 1))
        S(Barrier(landed=[ring.unit[k] for k in landed], release=[ring.unit[k] for k in release]))
        ring.release(release)
        m1 = qk(t + 1) if t + 1 < 32 else []
        m2 = pv(t - 1) if t >= 1 else []
        n1, n = len(m1), len(m1) + len(m2)
        rv = ring.rV(t - 1) if t >= 1 else []
        rk = ring.rK(t + 2) if t + 2 < 32 else []
        sm = softmax(t) if t < 32 else []
        mx = tmax(t + 1) if t + 1 < 32 else []
        dm = ring.issue()
        if m1 and m2:
            S(weave(m1 + m2, [(rv, 0, n1 - 2), (dm, 1, n - 3), (sm, 0, n - 2), (rk, n1, n - 2), (mx, n1 + 2, n - 1)]))
        elif m1:
            S(weave(m1, [(dm, 0, n - 1), (sm, 0, n - 1)])); S(rk); S(mx)
        else:
            S(rv); S(dm); S(sm); S(m2)
        if t == 15:
            check(16, 0, False)
            init_max(16)
        elif t + 1 < 32:
            check(t + 1, 0 if t < 15 else 1, True)
        elif t == 31:
            check(32, 1, False)
        if t == 16:
            epilogue(0)
            stamp(S, o, 3)
    epilogue(1)


def rare_paths(stubs):
    L = []
    for n, oset in stubs:
        L.append(f"L_stub{n}:\ns_call_b64 s[{sLink}:{sLink+1}], L_rare{oset}\ns_branch L_back{n}")
    for oset in range(2):
        l, ob = (vL0, vL1)[oset], aO + oset * 64
        L.append(f"L_rare{oset}:\ns_nop 15\ns_cmp_eq_u64 s[{sFlag}:{sFlag+1}], 0\ns_cbranch_scc1 L_rare{oset}_a")
        for r in range(64):
            L.append(f"v_accvgpr_read_b32 v{vT0}, a{ob + r}\nv_mul_f32 v{vT0}, v{vF}, v{vT0}\nv_accvgpr_write_b32 a{ob + r}, v{vT0}")
        L.append(f"s_mov_b64 s[{sFlag}:{sFlag+1}], 0")
        L.append(f"L_rare{oset}_a:\ns_cbranch_vccz L_rare{oset}_b")
        L.append(f"v_mov_b32 v{vT0}, v{vTM}\ns_nop 1\nv_permlane32_swap_b32 v{vT0}, v{vTM}\ns_nop 1")
        L.append(f"v_max3_f32 v{vT0}, v{vT0}, v{vTM}, v{vM}\nv_sub_f32 v{vF}, v{vM}, v{vT0}\nv_mul_f32 v{vF}, s{sC}, v{vF}")
        L.append(f"v_exp_f32 v{vF}, v{vF}\nv_mov_b32 v{vM}, v{vT0}\nv_mul_f32 v{vMC}, s{sC}, v{vT0}")
        L.append(f"v_add_f32 v{vThr}, {f32(THR_RAW)}, v{vT0}\nv_mul_f32 v{l}, v{vF}, v{l}\ns_mov_b64 s[{sFlag}:{sFlag+1}], 1")
        L.append(f"L_rare{oset}_b:\ns_nop 3\ns_setpc_b64 s[{sLink}:{sLink+1}]")
    return "\n".join(L).split("\n")


def kernel1(o, code_bytes):
    S = Stream()
    header(S, o, "k1", code_bytes)
    stamp(S, o, 0)
    S(f"s_mul_i32 s{sT0}, s{sBP}, 458752"); srd(S, S_X, 64, sT0, 458752)
    S(f"s_lshl_b32 s{sT1}, s{sOct}, 3\ns_add_u32 s{sT1}, s{sT1}, s{sHH}")
    S(f"s_lshl_b32 s{sT0}, s{sT1}, 8"); srd(S, S_W, 70, sT0, 8388608 - 31 * 256)
    S(f"s_lshl_b32 s{sT0}, s{sBP}, 6\ns_add_u32 s{sT0}, s{sT0}, s{sT1}\ns_lshl_b32 s{sT0}, s{sT0}, 17")
    srd(S, S_K, 66, sT0, 4194304 + 131072); srd(S, S_V, 68, sT0, 4194304 + 131072)
    S(f"s_and_b32 s{sT0}, s2, 7\ns_lshl_b32 s{sT0}, s{sT0}, 2\ns_add_u32 s{sT0}, s{sT0}, s{sBP}\ns_mul_i32 s{sT0}, s{sT0}, {O_GROUP}")
    S(f"s_mul_i32 s{sT1}, s{sHH}, 57344\ns_add_u32 s{sT0}, s{sT0}, s{sT1}")
    srd(S, S_O, 88, sT0, 57344)
    rot_offsets(S, o, 128, 64 * 8192)
    gemm_addresses(S, "q")
    kv_addresses(S)
    ring = Ring(S, o)
    gemm(S, o, "q", lambda s: ring.issue(list(o.pre_stages).count(s)))
    S(ring.issue())
    stamp(S, o, 1)
    uQ = q_exchange(S, ring)
    stamp(S, o, 2)
    stubs = []
    attention(S, o, ring, uQ, stubs)
    stamp(S, o, 4)
    S(WaitAll(vm=0))
    stamp(S, o, 5)
    body = S.finalize(True)
    return body + ["L_end_k1:", "s_endpgm"] + rare_paths(stubs)


def kernel2(o, code_bytes):
    S = Stream()
    header(S, o, "k2", code_bytes)
    stamp(S, o, 0)
    S(f"s_and_b32 s{sT0}, s2, 7\ns_lshl_b32 s{sT0}, s{sT0}, 2\ns_add_u32 s{sT0}, s{sT0}, s{sBP}\ns_mul_i32 s{sT0}, s{sT0}, {O_GROUP}")
    srd(S, S_X, 88, sT0, O_GROUP)
    S(f"s_lshl_b32 s{sT0}, s{sOct}, 21\ns_lshl_b32 s{sT1}, s{sHH}, 8\ns_add_u32 s{sT0}, s{sT0}, s{sT1}")
    srd(S, S_W, 72, sT0, 2097152 - 7 * 256)
    S(f"s_lshl_b32 s{sT0}, s{sBr}, 2\ns_add_u32 s{sT0}, s{sT0}, s{sBP}\ns_lshl_b32 s{sT0}, s{sT0}, 3\ns_add_u32 s{sT0}, s{sT0}, s{sHH}")
    S(f"s_lshl_b32 s{sT0}, s{sT0}, 2\ns_add_u32 s{sT0}, s{sT0}, s{sOct}\ns_mul_i32 s{sT0}, s{sT0}, {PART_CU}")
    S(f"s_mul_i32 s{sT1}, s{sWave}, 28672\ns_add_u32 s{sT0}, s{sT0}, s{sT1}\ns_add_u32 s{sT0}, s{sT0}, {WS_PART}")
    srd(S, S_P, 88, sT0, 28672)
    rot_offsets(S, o, 28672, 64 * 2048)
    gemm_addresses(S, "o")
    gemm(S, o, "o")
    stamp(S, o, 1)
    S(f"v_lshlrev_b32 v{vT0}, 4, v{vLane}")
    for j in range(7):
        S(f"s_mov_b32 s{sT0}, {j * 4096}")
        for i in range(4):
            c = ACC + (j * 4 + i) * 4
            S(f"buffer_store_dwordx4 v[{c}:{c+3}], v{vT0}, s[{S_P}:{S_P+3}], s{sT0} offen offset:{i * 1024}")
    S(WaitAll(vm=0))
    stamp(S, o, 2)
    return S.finalize(True) + ["L_end_k2:", "s_endpgm"]


def kernel3(o):
    S = Stream()
    header(S, o, "k3", 0)
    S(f"s_lshr_b32 s{sT0}, s2, 2\ns_mul_i32 s{sT0}, s{sT0}, {4 * PART_CU}\ns_and_b32 s{sT1}, s2, 3\ns_mul_i32 s{sT2}, s{sT1}, 28672")
    S(f"s_add_u32 s{sT0}, s{sT0}, s{sT2}\ns_add_u32 s{sT0}, s{sT0}, {WS_PART}")
    srd(S, S_P, 88, sT0, 3 * PART_CU + 28672)
    srd(S, S_O, 84, None, 896 * 4096)
    S(f"v_lshlrev_b32 v{vT0}, 4, v{vLane}\ns_lshl_b32 s{sT0}, s{sWave}, 10\nv_add_u32 v{vT0}, s{sT0}, v{vT0}")
    for j in range(7):
        for kq in range(4):
            r = (j * 4 + kq) * 4
            S(f"s_mov_b32 s{sT0}, {kq * PART_CU + j * 4096}")
            S(f"buffer_load_dwordx4 v[{r}:{r+3}], v{vT0}, s[{S_P}:{S_P+3}], s{sT0} offen")
    S(f"s_bfe_u32 s{sT0}, s2, 0x20005\ns_mul_i32 s{sT0}, s{sT0}, 224\ns_bfe_u32 s{sT2}, s2, 0x10001\ns_mul_i32 s{sT2}, s{sT2}, 112")
    S(f"s_add_u32 s{sT0}, s{sT0}, s{sT2}\ns_lshl_b32 s{sT0}, s{sT0}, 12")
    S(f"s_lshr_b32 s{sT2}, s2, 7\ns_lshl_b32 s{sT2}, s{sT2}, 11\ns_add_u32 s{sT0}, s{sT0}, s{sT2}")
    S(f"s_bfe_u32 s{sT2}, s2, 0x30002\ns_lshl_b32 s{sT2}, s{sT2}, 8\ns_add_u32 s{sT0}, s{sT0}, s{sT2}")
    S(f"s_and_b32 s{sT2}, s2, 1\ns_lshl_b32 s{sT2}, s{sT2}, 7\ns_add_u32 s{sT0}, s{sT0}, s{sT2}")
    S(f"s_lshl_b32 s{sT2}, s{sWave}, 5\ns_add_u32 s{sT0}, s{sT0}, s{sT2}")
    S(f"v_and_b32 v{vT1}, 15, v{vLane}\nv_lshrrev_b32 v{vT2}, 4, v{vLane}\nv_lshlrev_b32 v{vT2}, 3, v{vT2}")
    S(f"v_lshl_add_u32 v{vT1}, v{vT1}, 12, v{vT2}\nv_add_u32 v{vT1}, s{sT0}, v{vT1}")
    for j in range(7):
        r = j * 16
        for e in range(4):
            S(f"v_add_f32 v{r+e}, v{r+e}, v{r+4+e}\nv_add_f32 v{r+8+e}, v{r+8+e}, v{r+12+e}\nv_add_f32 v{r+e}, v{r+e}, v{r+8+e}")
        S(f"v_cvt_pk_bf16_f32 v{r}, v{r}, v{r+1}\nv_cvt_pk_bf16_f32 v{r+1}, v{r+2}, v{r+3}")
        S(f"s_mov_b32 s{sT0}, {j * 65536}")
        S(f"buffer_store_dwordx2 v[{r}:{r+1}], v{vT1}, s[{S_O}:{S_O+3}], s{sT0} offen")
    return S.finalize(True) + ["L_end_k3:", "s_endpgm"]


def descriptor(name, vgpr=512, accum=256):
    return (f".amdhsa_kernel {name}\n  .amdhsa_next_free_vgpr {vgpr}\n  .amdhsa_next_free_sgpr 102\n"
            f"  .amdhsa_accum_offset {accum}\n  .amdhsa_group_segment_fixed_size 0\n  .amdhsa_kernarg_size 104\n"
            "  .amdhsa_user_sgpr_count 2\n  .amdhsa_user_sgpr_kernarg_segment_ptr 1\n"
            "  .amdhsa_system_sgpr_workgroup_id_x 1\n  .amdhsa_float_denorm_mode_32 3\n.end_amdhsa_kernel\n")


def est_bytes(lines):
    n = 0
    for l in lines:
        if l.endswith(":"):
            continue
        op = l.split()[0]
        small = (op.startswith("s_") and not op.startswith(("s_load", "s_memtime")) and "0x" not in l
                 and not any(t.strip(",").isdigit() and int(t.strip(",")) > 64 for t in l.split()[1:]))
        small = small or op in ("v_exp_f32", "v_rcp_f32", "v_permlane32_swap_b32")
        n += 4 if small else 8
    return n


def build(o):
    k1 = kernel1(o, 0); b1 = est_bytes(k1) * 9 // 10 // 64 * 64
    k2 = kernel2(o, 0); b2 = est_bytes(k2) * 9 // 10 // 64 * 64
    print("pretouch bytes", b1, b2)
    k1, k2, k3 = kernel1(o, b1), kernel2(o, b2), kernel3(o)
    ref = open(f"cdna_kernels/{NAME}.s.ref").read().split("\n")
    head = [l for l in ref[:ref.index('.text')] if l.startswith(";") and "@launch" not in l and "Override" not in l and "grid=ceil" not in l]
    out = head + [f"; @launch kernel=qattn_kernel grid=(256,1,1) block=(256,1,1) lds=163840",
                  f"; @launch kernel=oproj_kernel grid=(256,1,1) block=(256,1,1) lds=163840",
                  f"; @launch kernel=oreduce_kernel grid=(256,1,1) block=(256,1,1) lds=0",
                  '.amdgcn_target "amdgcn-amd-amdhsa--gfx950"', ".text"]
    for name, body in (("qattn_kernel", k1), ("oproj_kernel", k2), ("oreduce_kernel", k3)):
        out += [f".globl {name}", ".p2align 8", f".type {name},@function", f"{name}:"]
        out += [l if l.endswith(":") else "    " + l for l in body]
    out += ['.section .rodata,"a"', ".p2align 6", descriptor("qattn_kernel"), ".p2align 6", descriptor("oproj_kernel"),
            ".p2align 6", descriptor("oreduce_kernel", 256, 256)]
    return "\n".join(out)


if __name__ == "__main__":
    o = Opt()
    path = f"cdna_kernels/{NAME}.s"
    for a in sys.argv[1:]:
        k, v = a.split("=", 1)
        if k == "out":
            path = v
        else:
            setattr(o, k, eval(v))
    open(path, "w").write(build(o))
    print("wrote", path)
```

```python
import re, struct, sys
from asmgen import Stream, I, Barrier, WaitAll, weave

NAME = "concat_heads__mha_block_cached__gqa_block_cached__near_ridge"

O_GROUP = 458752
WS_PART = 16 << 20
PART_DEST, PART_PASS = 21504, 86016
WS_FLAG = 64 << 20
WS_STAMP = 128 << 20
OOB = 0x40000000

XA_SLOT, XB_SLOT, W_SLOT = 12288, 16384, 16384
LAY = {"q": dict(xa=73728, xb=73728 + 24576, w=73728 + 57344, nw=2)}
L_Q = 73728
L_GW, N_GW, N_GX = 73728, 5, 4

S_X, S_W, S_K, S_V, S_O, S_P, S_F, S_F2, S_ST = 8, 12, 16, 20, 24, 44, 92, 96, 60
sXo, sWo, sWave, sM_KV, sM_XA, sM_XB, sKVo, sRot = 28, 29, 30, 31, 32, 33, 34, 35
sTmp, sLink, sSpin, sKVr = 38, 40, 42, 36
sBr, sOct, sHH, sBP, sT0, sT1, sT2, sT3 = 48, 49, 50, 51, 52, 53, 54, 55
sOo = 56
sSt = 90

ACC, XA, XB = 0, 112, 136
vLane, vT0, vT1, vT2, vT3, vSt, vStD, vDummy = 184, 185, 186, 187, 188, 189, 190, 191
vOXA, vOXB, vOW = 192, 195, 199
vXA, vXB, vWa = 203, 205, 207
vOX, vOX2, vGX, vFS1, vFS2, vFL, vOne = 192, 193, 194, 195, 196, 197, 198
vGW = 203
vOK, vOV, vOO = 211, 213, 214
vTS, vPoll, vF, vL0, vL1 = 215, 216, 217, 218, 219
vKa, vVa = 220, 236
vQ = 244
vSel = 244
vP4, vP2, vP4s, vP2s, vP4l, vP2l, vOut = 250, 251, 252, 253, 254, 255, 211
SB, PB, KF, VF, EB, NM, EPI = 0, 32, 48, 80, 112, 128, 144
GA, GXF, NBUF = 0, 112, 9
aO, aQ, aPark = 0, 64, 128
vKa3, vVa3, vDW = 168, 176, 180

SCALE_C = 0.12751743
SUM_THR = 4096.0


def f32(x):
    return "0x%08x" % struct.unpack("<I", struct.pack("<f", x))[0]


class Opt:
    stamps = False
    kv_nt = True
    pre_stages = (1, 1, 2, 2, 3, 5, 5, 6, 6, 7, 7, 9, 9, 10, 10, 11, 11, 13, 13, 13, 14, 14, 14, 15, 15)
    pretouch = True
    rot = True
    depth0, depth_min, depth_slope = 29, 9, 0.85
    out_fl = ""
    drop = ()
    wpre = (31, 32)
    fine = False
    fine3 = False
    park, maxreq = 16, 3
    fine2 = False
    g_f1b, lead, grp, w_top, qgrp = 2, 12, 4, 3, 4
    o_fl = "sc1"


def srd(S, r, ptr, off_sreg, size):
    if off_sreg is None:
        S(f"s_mov_b32 s{r}, s{ptr}\ns_mov_b32 s{r+1}, s{ptr+1}")
    else:
        S(f"s_add_u32 s{r}, s{ptr}, s{off_sreg}\ns_addc_u32 s{r+1}, s{ptr+1}, 0")
    S(f"s_mov_b32 s{r+2}, {size}\ns_mov_b32 s{r+3}, 0x20000")


def stamp(S, o, idx, real=False):
    if not o.stamps:
        return
    S(f"{'s_memrealtime' if real else 's_memtime'} s[{sSt}:{sSt+1}]")
    S(WaitAll(lgkm=0))
    S(f"v_mov_b32 v{vStD}, s{sSt}")
    S(f"buffer_store_dword v{vStD}, v{vSt}, s[{S_ST}:{S_ST+3}], 0 offen offset:{idx * 4}")
    if not real and 1 <= idx <= 9:
        stamp(S, o, 40 + idx, True)


def header(S, o, code_bytes):
    S("s_cmp_ge_u32 s2, 256\ns_cbranch_scc1 L_end")
    S("s_load_dwordx16 s[64:79], s[0:1], 0\ns_load_dwordx8 s[80:87], s[0:1], 64\ns_load_dwordx2 s[88:89], s[0:1], 96")
    if o.pretouch and code_bytes:
        per = (code_bytes // 32 + 127) // 128 * 128
        S(f"s_getpc_b64 s[{sTmp}:{sTmp+1}]")
        S(f"s_and_b32 s{sTmp}, s{sTmp}, 0xffffff00")
        S(f"s_lshr_b32 s{sT0}, s2, 3\ns_mul_i32 s{sT0}, s{sT0}, {per}")
        S(f"v_lshlrev_b32 v{vT0}, 6, v0\nv_min_u32 v{vT0}, {per - 64}, v{vT0}\nv_add_u32 v{vT0}, s{sT0}, v{vT0}")
        S(f"v_min_u32 v{vT0}, {code_bytes - 64}, v{vT0}")
        S(f"global_load_dword v{vDummy}, v{vT0}, s[{sTmp}:{sTmp+1}]")
    S(f"v_and_b32 v{vLane}, 63, v0\nv_lshrrev_b32 v{vT0}, 6, v0\ns_nop 0\nv_readfirstlane_b32 s{sWave}, v{vT0}")
    S(f"s_and_b32 s{sOct}, s2, 3\ns_bfe_u32 s{sBr}, s2, 0x10002\ns_bfe_u32 s{sHH}, s2, 0x30003\ns_lshr_b32 s{sBP}, s2, 6")
    S(f"s_lshl_b32 s{sM_KV}, s{sWave}, 11\ns_mul_i32 s{sM_XA}, s{sWave}, 3072\ns_lshl_b32 s{sM_XB}, s{sWave}, 12")


def select_pointers(S, o):
    S(WaitAll(lgkm=0))
    S(f"s_cmp_eq_u32 s{sBr}, 0")
    for k in range(5):
        S(f"s_cselect_b64 s[{64+2*k}:{65+2*k}], s[{64+2*k}:{65+2*k}], s[{74+2*k}:{75+2*k}]")
    if o.stamps:
        S(f"s_lshl_b32 s{sT0}, s2, 10\ns_lshl_b32 s{sT1}, s{sWave}, 8\ns_add_u32 s{sT0}, s{sT0}, s{sT1}")
        S(f"s_add_u32 s{sT0}, s{sT0}, {WS_STAMP}")
        srd(S, S_ST, 88, sT0, 256)
        S(f"v_lshlrev_b32 v{vSt}, 8, v{vLane}")
        stamp(S, o, 32, True)
        stamp(S, o, 0)


def rot_base(S, grp):
    if grp == 16:
        S(f"s_lshl_b32 s{sRot}, s{sBP}, 1\ns_add_u32 s{sRot}, s{sRot}, s{sHH}\ns_lshl_b32 s{sRot}, s{sRot}, 1")
    elif grp == 8:
        S(f"s_lshl_b32 s{sRot}, s{sBP}, 1\ns_add_u32 s{sRot}, s{sRot}, s{sHH}")
    else:
        S(f"s_add_u32 s{sRot}, s{sBP}, s{sHH}")


def stage_index(reg, k, n):
    out = [I(f"s_add_u32 s{reg}, s{sRot}, {k % n}"), I(f"s_and_b32 s{reg}, s{reg}, {n - 1}")]
    if k >= n:
        out.append(I(f"s_add_u32 s{reg}, s{reg}, {k // n * n}"))
    return out


def gemm_dma_addresses(S, kind):
    wstride = 8192 if kind == "q" else 2048
    S(f"v_lshrrev_b32 v{vT0}, 4, v{vLane}\nv_bfe_u32 v{vT1}, v{vLane}, 1, 3\nv_and_b32 v{vT2}, 1, v{vLane}")
    S(f"v_xor_b32 v{vT1}, v{vT1}, v{vT0}\nv_lshl_add_u32 v{vT1}, v{vT1}, 1, v{vT2}\nv_lshlrev_b32 v{vT1}, 4, v{vT1}")
    S(f"v_lshl_add_u32 v{vT1}, v{vT0}, {13 if kind == 'q' else 11}, v{vT1}\nv_xor_b32 v{vT2}, 128, v{vT1}")
    S(f"s_mul_i32 s{sT2}, s{sWave}, {16 * wstride}")
    for p in range(4):
        hb = ((p >> 1) & 1) if kind == "q" else (p & 1)
        S(f"v_add_u32 v{vOW + p}, s{sT2}, v{vT2 if hb else vT1}")
        if p < 3:
            S(f"s_add_u32 s{sT2}, s{sT2}, {4 * wstride - 1024}")
    S(f"s_lshr_b32 s{sT0}, s{sWave}, 1\ns_and_b32 s{sT1}, s{sWave}, 1")
    if kind == "q":
        S(f"v_lshrrev_b32 v{vT1}, 3, v{vLane}\nv_and_b32 v{vT2}, 7, v{vLane}\nv_xor_b32 v{vT2}, v{vT2}, v{vT0}")
        S(f"v_lshlrev_b32 v{vT2}, 4, v{vT2}\nv_lshl_add_u32 v{vT1}, v{vT1}, 11, v{vT2}\nv_xor_b32 v{vT2}, 64, v{vT1}")
        S(f"s_cmp_eq_u32 s{sT1}, 0\ns_cselect_b64 vcc, -1, 0\nv_cndmask_b32 v{vT3}, v{vT2}, v{vT1}, vcc\nv_xor_b32 v{vT0}, 64, v{vT3}")
        S(f"s_mul_i32 s{sT2}, s{sT0}, {112 * 2048}\ns_mul_i32 s{sT3}, s{sT1}, {24 * 2048}\ns_add_u32 s{sT3}, s{sT3}, s{sT2}")
        for p in range(3):
            S(f"v_add_u32 v{vOXA + p}, s{sT3}, v{vT0 if p & 1 else vT3}")
            if p < 2:
                S(f"s_add_u32 s{sT3}, s{sT3}, {8 * 2048 - 1024}")
        S(f"s_mul_i32 s{sT3}, s{sT1}, {32 * 2048}\ns_add_u32 s{sT3}, s{sT3}, s{sT2}\ns_add_u32 s{sT3}, s{sT3}, {48 * 2048}")
        for p in range(4):
            S(f"v_add_u32 v{vOXB + p}, s{sT3}, v{vT2 if p & 1 else vT1}")
            if p < 3:
                S(f"s_add_u32 s{sT3}, s{sT3}, {8 * 2048 - 1024}")
    else:
        S(f"v_lshlrev_b32 v{vGX}, 4, v{vLane}\nv_add_u32 v{vOX}, s{sM_XB}, v{vGX}\ns_cmp_eq_u32 s{sWave}, 3")
        S(f"s_cselect_b32 s{sT2}, {OOB}, 0\nv_add_u32 v{vOX2}, s{sT2}, v{vOX}")


def gemm_read_addresses(S, kind):
    S(f"s_lshr_b32 s{sT0}, s{sWave}, 1\ns_and_b32 s{sT1}, s{sWave}, 1")
    if kind == "q":
        lay = LAY[kind]
        S(f"s_mul_i32 s{sT2}, s{sT0}, 6144\ns_add_u32 s{sT2}, s{sT2}, {lay['xa']}")
        S(f"s_lshl_b32 s{sT3}, s{sT0}, 13\ns_add_u32 s{sT3}, s{sT3}, {lay['xb']}")
        S(f"v_lshrrev_b32 v{vT1}, 4, v{vLane}\nv_and_b32 v{vT0}, 15, v{vLane}\nv_lshrrev_b32 v{vT2}, 1, v{vT0}")
        S(f"v_xor_b32 v{vT2}, v{vT2}, v{vT1}\nv_lshlrev_b32 v{vT2}, 4, v{vT2}\nv_lshl_add_u32 v{vT2}, v{vT0}, 7, v{vT2}")
        S(f"v_xor_b32 v{vT3}, 64, v{vT2}")
        S(f"v_add_u32 v{vXA}, s{sT2}, v{vT2}\nv_add_u32 v{vXA+1}, s{sT2}, v{vT3}")
        S(f"v_add_u32 v{vXB}, s{sT3}, v{vT2}\nv_add_u32 v{vXB+1}, s{sT3}, v{vT3}")
    S(f"v_bfe_u32 v{vT1}, v{vLane}, 2, 2\nv_bfe_u32 v{vT2}, v{vLane}, 4, 1")
    if kind == "q":
        S(f"v_lshrrev_b32 v{vT0}, 4, v{vLane}\nv_lshl_add_u32 v{vT0}, v{vT0}, 3, v{vT1}")
    else:
        S(f"v_lshrrev_b32 v{vT0}, 5, v{vLane}\nv_lshlrev_b32 v{vT0}, 4, v{vT0}\nv_lshl_add_u32 v{vT0}, v{vT2}, 2, v{vT0}")
        S(f"v_add_u32 v{vT0}, v{vT0}, v{vT1}")
    S(f"v_lshl_add_u32 v{vT1}, v{vT2}, 2, v{vT1}")
    S(f"v_and_b32 v{vT2}, 3, v{vLane}\nv_lshlrev_b32 v{vT2}, 3, v{vT2}\nv_lshl_add_u32 v{vT2}, v{vT0}, 8, v{vT2}")
    S(f"v_add_u32 v{vT2}, {LAY['q']['w'] if kind == 'q' else L_GW}, v{vT2}")
    if kind == "q":
        for i in range(4):
            S(f"s_lshl_b32 s{sT2}, s{sT1}, 2\ns_add_u32 s{sT2}, s{sT2}, {i}")
            S(f"v_xor_b32 v{vT3}, s{sT2}, v{vT1}\nv_lshl_add_u32 v{vWa + i}, v{vT3}, 5, v{vT2}")
    else:
        for i in range(2):
            S(f"s_lshl_b32 s{sT2}, s{sT0}, 1\ns_add_u32 s{sT2}, s{sT2}, {i}\ns_xor_b32 s{sT2}, s{sT2}, s{sOct}")
            S(f"s_lshl_b32 s{sT2}, s{sT2}, 1\ns_add_u32 s{sT2}, s{sT2}, s{sT1}")
            S(f"v_xor_b32 v{vT3}, s{sT2}, v{vT1}\nv_lshl_add_u32 v{vGW + i}, v{vT3}, 5, v{vT2}")
            S(f"v_add_u32 v{vGW + 2 + i}, 0x10000, v{vGW + i}")


class Gemm:
    def __init__(self, S, o, kind):
        self.S, self.o, self.kind = S, o, kind
        lay = self.lay = LAY[kind]
        nw = lay["nw"]
        self.uXA = [S.unit(f"{kind}XA{s}", lay["xa"] + (s & 1) * XA_SLOT, lay["xa"] + ((s & 1) + 1) * XA_SLOT) for s in range(16)]
        self.uXB = [S.unit(f"{kind}XB{s}", lay["xb"] + (s & 1) * XB_SLOT, lay["xb"] + ((s & 1) + 1) * XB_SLOT) for s in range(16)]
        self.uW = [S.unit(f"{kind}W{s}", lay["w"] + (s % nw) * W_SLOT, lay["w"] + (s % nw + 1) * W_SLOT) for s in range(16)]
        self.w_next = 0

    def dma(self, unit, mreg, voff, same, n, srdr, soff, fl):
        items = []
        for p in range(n):
            grp = [I(f"s_add_u32 m0, s{mreg}, {unit.lo}"), I("s_nop 0")] if p == 0 else []
            v = voff if same else voff + p
            off = f" offset:{1024 * p}" if p else ""
            grp.append(I(f"buffer_load_dwordx4 v{v}, s[{srdr}:{srdr+3}], s{soff} offen{off}{fl} lds", unit, cost=3))
            items.append(grp)
        return items

    def dW(self):
        s = self.w_next
        if s >= 16:
            return []
        self.w_next += 1
        return [stage_index(sWo, s, self.o.qgrp) + [I(f"s_lshl_b32 s{sWo}, s{sWo}, 19")]] + self.dma(self.uW[s], sM_XB, vOW, False, 4, S_W, sWo, "")

    def dXA(self, s):
        return [stage_index(sXo, s, self.o.qgrp) + [I(f"s_lshl_b32 s{sXo}, s{sXo}, 7")]] + self.dma(self.uXA[s], sM_XA, vOXA, False, 3, S_X, sXo, "")

    def dXB(self, s):
        return self.dma(self.uXB[s], sM_XB, vOXB, False, 4, S_X, sXo, "")

    @staticmethod
    def wreg(s, ks, i):
        return (s & 1) * 32 + (ks * 4 + i) * 4

    def rW(self, s):
        sec = 1024 if self.kind == "q" else 2048
        rel = self.uW[s].lo - self.lay["w"]
        out = []
        for ks in range(2):
            for i in range(4):
                a = self.wreg(s, ks, i)
                for h in range(2):
                    out.append(I(f"ds_read_b64_tr_b16 a[{a+2*h}:{a+2*h+1}], v{vWa + (rel >> 16) * 4 + i} "
                                 f"offset:{(rel & 0xffff) + ks * 8192 + h * sec}", self.uW[s]))
        return out

    def rX(self, s, lo, hi):
        out = []
        for j in range(lo, hi):
            for ks in range(2):
                if j < 3:
                    r, base, off, u = XA + (j * 2 + ks) * 4, vXA, (s & 1) * XA_SLOT + j * 2048, self.uXA[s]
                else:
                    r, base, off, u = XB + ((j - 3) * 2 + ks) * 4, vXB, (s & 1) * XB_SLOT + (j - 3) * 2048, self.uXB[s]
                if self.kind == "q":
                    base += ks
                else:
                    off += ks * 1024
                out.append(I(f"ds_read_b128 v[{r}:{r+3}], v{base} offset:{off}", u))
        return out

    def mf(self, s, lo, hi):
        out = []
        for j in range(lo, hi):
            for ks in range(2):
                xr = (XA + (j * 2 + ks) * 4) if j < 3 else (XB + ((j - 3) * 2 + ks) * 4)
                for i in range(4):
                    c = ACC + (j * 4 + i) * 4
                    a = self.wreg(s, ks, i)
                    src = "0" if (s == 0 and ks == 0) else f"v[{c}:{c+3}]"
                    out.append(I(f"v_mfma_f32_16x16x32_bf16 v[{c}:{c+3}], a[{a}:{a+3}], v[{xr}:{xr+3}], {src}"))
        return out

    def start(self):
        S = self.S
        for s in range(2):
            if self.w_next <= s:
                S(self.dW())
            S(self.dXA(s)); S(self.dXB(s))

    def loop(self, extra_dma=None):
        S, uW, uXA, uXB = self.S, self.uW, self.uXA, self.uXB
        S(Barrier(landed=[uW[0], uXA[0]]))
        S(self.rW(0)); S(self.rX(0, 0, 3))
        for s in range(16):
            S(Barrier(landed=[uXB[s]], release=[uW[s], uXA[s]]))
            d = self.dW()
            if s + 2 < 16:
                d += self.dXA(s + 2)
            S(weave(self.mf(s, 0, 3), [(self.rX(s, 3, 7), 0, 15), (d, 0, 21)]))
            S(Barrier(landed=[uW[s + 1], uXA[s + 1]] if s + 1 < 16 else [], release=[uXB[s]]))
            q = []
            if s + 1 < 16:
                q.append((self.rW(s + 1) + self.rX(s + 1, 0, 3), 0, 25))
            d = self.dXB(s + 2) if s + 2 < 16 else []
            if extra_dma:
                d += extra_dma(s)
            q.append((d, 0, 28))
            S(weave(self.mf(s, 3, 7), q))
            if self.o.fine3 and s % 2 == 1:
                stamp(S, self.o, 10 + s // 2); stamp(S, self.o, 50 + s // 2, True)


class Ring:
    def __init__(self, S, o):
        self.S, self.o = S, o
        seq = [("K", 0), ("K", 1), ("K", 2)]
        for t in range(32):
            seq.append(("V", t))
            if t + 3 < 32:
                seq.append(("K", t + 3))
        self.seq, self.next, self.released = seq, 0, 0
        self.free = list(range(9))
        self.unit, self.slot, self.parked = {}, {}, {}

    def source(self, key):
        t = key[1]
        fl = " nt" if self.o.kv_nt else ""
        r = S_K if key[0] == "K" else S_V
        v0, v1 = (vOK, vOK + 1) if key[0] == "K" else (vOV, vOV)
        return (I(f"s_mov_b32 s{sKVo}, {(t >> 4) * 4194304 + (t & 15) * 8192}"),
                f"v{v0}, s[{r}:{r+3}], s{sKVo} offen{fl}", f"v{v1}, s[{r}:{r+3}], s{sKVo} offen offset:1024{fl}")

    def take_slot(self, key):
        self.free.sort()
        sl = self.free.pop(0)
        u = self.S.unit(f"{key[0]}{key[1]}", sl * 8192, sl * 8192 + 8192)
        self.unit[key], self.slot[key] = u, sl
        return sl, u

    def issue(self, maxn=99, depth=99, keep=0):
        items = []
        while len(self.free) > keep and self.next < len(self.seq) and maxn > 0 and self.next - self.released < depth:
            maxn -= 1
            key = self.seq[self.next]; self.next += 1
            sl, u = self.take_slot(key)
            so, a0, a1 = self.source(key)
            items.append([I(f"s_add_u32 m0, s{sM_KV}, {sl * 8192}"), so, I(f"buffer_load_dwordx4 {a0} lds", u, cost=3)])
            items.append([I(f"buffer_load_dwordx4 {a1} lds", u, cost=3)])
        return items

    def prefetch(self, n):
        items = []
        for _ in range(n):
            if self.free:
                items += self.issue(1)
            elif len(self.parked) < self.o.park:
                key = self.seq[self.next]; self.next += 1
                a = self.parked[key] = aPark + 8 * len(self.parked)
                so, a0, a1 = self.source(key)
                items.append([so, I(f"buffer_load_dwordx4 a[{a}:{a+3}], {a0}", cost=3)])
                items.append([I(f"buffer_load_dwordx4 a[{a+4}:{a+7}], {a1}", cost=3)])
        return items

    def waiting(self):
        return sum(1 for k in self.parked if k not in self.unit)

    def dump(self, keys):
        items = []
        for key in keys:
            if key in self.parked and key not in self.unit:
                sl, u = self.take_slot(key)
                a = self.parked[key]
                for p in range(2):
                    items.append(I(f"ds_write_b128 v{vDW + (sl >> 3)}, a[{a+4*p}:{a+4*p+3}] offset:{(sl & 7) * 8192 + 1024 * p}", u, cost=2))
        return items

    def release(self, keys):
        for k in keys:
            self.free.append(self.slot[k])
            self.released += 1

    def rK(self, t):
        sl, u = self.slot[("K", t)], self.unit[("K", t)]
        base = (vKa, vKa + 8, vKa3)[sl >> 3]
        return [I(f"ds_read_b128 v[{KF+4*s}:{KF+4*s+3}], v{base + s} offset:{(sl & 7) * 8192}", u) for s in range(8)]

    def rV(self, t):
        sl, u = self.slot[("V", t)], self.unit[("V", t)]
        base = (vVa, vVa + 4, vVa3)[sl >> 3]
        out = []
        for hh in range(2):
            for uu in range(4):
                r = VF + (hh * 4 + uu) * 4
                for sec in range(2):
                    out.append(I(f"ds_read_b64_tr_b16 v[{r+2*sec}:{r+2*sec+1}], v{base + uu} "
                                 f"offset:{(sl & 7) * 8192 + hh * 4096 + sec * 2048}", u))
        return out


def kv_addresses(S):
    S(f"v_lshrrev_b32 v{vT0}, 4, v{vLane}\nv_and_b32 v{vT1}, 15, v{vLane}\ns_lshl_b32 s{sT0}, s{sWave}, 3")
    S(f"v_add_u32 v{vT2}, s{sT0}, v{vT0}")
    S(f"v_and_b32 v{vT3}, 15, v{vT2}\nv_xor_b32 v{vT3}, v{vT3}, v{vT1}")
    S(f"v_lshlrev_b32 v{vT3}, 4, v{vT3}\nv_lshl_add_u32 v{vOK}, v{vT2}, 8, v{vT3}\nv_xor_b32 v{vOK + 1}, 64, v{vOK}")
    S(f"v_lshlrev_b32 v{vT3}, 2, v{vT0}\nv_xor_b32 v{vT3}, v{vT3}, v{vT1}\nv_lshlrev_b32 v{vT3}, 4, v{vT3}")
    S(f"v_lshl_add_u32 v{vOV}, v{vT2}, 8, v{vT3}")
    S(f"v_and_b32 v{vT2}, 31, v{vLane}\nv_lshrrev_b32 v{vT3}, 5, v{vLane}\nv_xor_b32 v{vT3}, v{vT3}, v{vT1}")
    S(f"v_lshlrev_b32 v{vT3}, 4, v{vT3}\nv_lshl_add_u32 v{vKa}, v{vT2}, 8, v{vT3}")
    for s in range(1, 8):
        S(f"v_xor_b32 v{vKa + s}, {32 * s}, v{vKa}")
    for s in range(8):
        S(f"v_add_u32 v{vKa + 8 + s}, 0x10000, v{vKa + s}\nv_add_u32 v{vKa3 + s}, 0x20000, v{vKa + s}")
    S(f"v_bfe_u32 v{vT0}, v{vLane}, 2, 2\nv_lshrrev_b32 v{vT1}, 5, v{vLane}\nv_lshl_add_u32 v{vT1}, v{vT1}, 2, v{vT0}")
    S(f"v_bfe_u32 v{vT2}, v{vLane}, 4, 1\nv_lshlrev_b32 v{vT2}, 5, v{vT2}\nv_lshl_add_u32 v{vT2}, v{vT1}, 8, v{vT2}")
    S(f"v_and_b32 v{vT3}, 3, v{vLane}\nv_lshl_add_u32 v{vT2}, v{vT3}, 3, v{vT2}\nv_lshl_add_u32 v{vVa}, v{vT0}, 6, v{vT2}")
    for u in range(1, 4):
        S(f"v_xor_b32 v{vVa + u}, {64 * u}, v{vVa}")
    for u in range(4):
        S(f"v_add_u32 v{vVa + 4 + u}, 0x10000, v{vVa + u}\nv_add_u32 v{vVa3 + u}, 0x20000, v{vVa + u}")
    S(f"v_lshlrev_b32 v{vDW}, 4, v{vLane}\nv_add_u32 v{vDW}, s{sM_KV}, v{vDW}")
    S(f"v_add_u32 v{vDW + 1}, 0x10000, v{vDW}\nv_add_u32 v{vDW + 2}, 0x20000, v{vDW}")
    S(f"v_bfe_u32 v{vT0}, v{vLane}, 4, 1\ns_lshl_b32 s{sT0}, s{sWave}, 1\nv_add_u32 v{vT0}, s{sT0}, v{vT0}")
    S(f"v_lshrrev_b32 v{vT1}, 5, v{vLane}\nv_and_b32 v{vT2}, 15, v{vLane}\nv_lshl_add_u32 v{vT1}, v{vT1}, 4, v{vT2}")
    S(f"v_lshlrev_b32 v{vT1}, 4, v{vT1}\nv_lshl_add_u32 v{vOO}, v{vT0}, 11, v{vT1}")
    S(f"v_cmp_eq_u32 vcc, 7, v{vT0}\nv_mov_b32 v{vT1}, 0x40000000\nv_cndmask_b32 v{vOO}, v{vOO}, v{vT1}, vcc")
    for k, val in enumerate((0, 28672, 14336, 14336 + 28672)):
        S(f"s_mov_b32 s{sOo + k}, {val}")


def q_exchange(S):
    uQ = S.unit("Q", L_Q, L_Q + 57344)
    S(f"s_lshr_b32 s{sT0}, s{sWave}, 1\ns_and_b32 s{sT1}, s{sWave}, 1\ns_mul_i32 s{sT0}, s{sT0}, 28672\ns_add_u32 s{sT0}, s{sT0}, {L_Q}")
    S(f"v_and_b32 v{vT0}, 15, v{vLane}\nv_lshrrev_b32 v{vT1}, 5, v{vLane}\nv_bfe_u32 v{vT2}, v{vLane}, 4, 1")
    S(f"v_lshlrev_b32 v{vT2}, 3, v{vT2}\nv_lshl_add_u32 v{vT2}, v{vT0}, 8, v{vT2}\nv_add_u32 v{vT2}, s{sT0}, v{vT2}")
    S(f"s_lshl_b32 s{sT1}, s{sT1}, 3\nv_add_u32 v{vT1}, s{sT1}, v{vT1}\nv_xor_b32 v{vT1}, v{vT1}, v{vT0}")
    for i in range(4):
        S(f"v_xor_b32 v{vT3}, {2 * i}, v{vT1}\nv_lshl_add_u32 v{vQ + i}, v{vT3}, 4, v{vT2}")
    S(f"v_mov_b32 v{vQ + 4}, {f32(SCALE_C)}\nv_mov_b32 v{vQ + 5}, {f32(SCALE_C)}")
    for j in range(7):
        for i in range(4):
            c = ACC + (j * 4 + i) * 4
            S(f"v_pk_mul_f32 v[{c}:{c+1}], v[{c}:{c+1}], v[{vQ+4}:{vQ+5}]\nv_pk_mul_f32 v[{c+2}:{c+3}], v[{c+2}:{c+3}], v[{vQ+4}:{vQ+5}]")
            S(f"v_cvt_pk_bf16_f32 v{c}, v{c}, v{c+1}\nv_cvt_pk_bf16_f32 v{c+1}, v{c+2}, v{c+3}")
            S(I(f"ds_write_b64 v{vQ + i}, v[{c}:{c+1}] offset:{j * 4096}", uQ))
    S(f"v_bfe_u32 v{vT0}, v{vLane}, 4, 1\ns_lshl_b32 s{sT0}, s{sWave}, 1\nv_add_u32 v{vT0}, s{sT0}, v{vT0}")
    S(f"s_lshl_b32 s{sT0}, s{sWave}, 13\ns_add_u32 s{sT0}, s{sT0}, {L_Q}\nv_mov_b32 v{vT1}, s{sT0}")
    S(f"v_subrev_u32 v{vT2}, 4096, v{vT1}\nv_cmp_eq_u32 vcc, 7, v{vT0}\nv_cndmask_b32 v{vT1}, v{vT1}, v{vT2}, vcc")
    S(Barrier(landed=[uQ]))
    for s in range(8):
        S(f"v_add_u32 v{vQ + s}, v{vT1}, v{vKa + s}")
    for t in range(2):
        for s in range(8):
            a = aQ + t * 32 + s * 4
            S(I(f"ds_read_b128 a[{a}:{a+3}], v{vQ + s} offset:{t * 28672}", uQ))
    return uQ


def softmax(t):
    b, pb = SB + (t & 1) * 16, PB + (t & 1) * 8
    out = []
    for k in range(9):
        if k < 8:
            out += [I(f"v_exp_f32 v{EB+2*k}, v{b+2*k}"), I(f"v_exp_f32 v{EB+2*k+1}, v{b+2*k+1}")]
        if k >= 1:
            r = 2 * k - 2
            if k == 1:
                out.append(I(f"v_add_f32 v{vTS}, v{EB}, v{EB+1}"))
            else:
                out += [I(f"v_add_f32 v{vTS}, v{vTS}, v{EB+r}"), I(f"v_add_f32 v{vTS}, v{vTS}, v{EB+r+1}")]
            out.append(I(f"v_cvt_pk_bf16_f32 v{pb + r // 2}, v{EB+r}, v{EB+r+1}"))
    return out


def tile_max(t, dst):
    b = SB + (t & 1) * 16
    out = [f"v_max3_f32 v{dst}, v{b}, v{b+1}, v{b+2}"]
    out += [f"v_max3_f32 v{dst}, v{dst}, v{b+r}, v{b+r+1}" for r in range(3, 15, 2)]
    out.append(f"v_max_f32 v{dst}, v{dst}, v{b+15}")
    return out


def attention(S, o, ring, uQ, stubs, setup_o, gemm_o, fl):
    uO = [S.unit(f"O{k}", -2 - k, -1 - k) for k in range(2)]
    def qk(t):
        b, qb = SB + (t & 1) * 16, aQ + (t >> 4) * 32
        c0 = "0" if (t & 15) == 0 else f"v[{NM}:{NM+15}]"
        return [I(f"v_mfma_f32_32x32x16_bf16 v[{b}:{b+15}], v[{KF+4*s}:{KF+4*s+3}], a[{qb+4*s}:{qb+4*s+3}], "
                  + (c0 if s == 0 else f"v[{b}:{b+15}]")) for s in range(8)]

    def pv(t):
        pb, ob = PB + (t & 1) * 8, aO
        out = []
        for hh in range(2):
            for uu in range(4):
                r, c = VF + (hh * 4 + uu) * 4, ob + uu * 16
                src = "0" if ((t & 15) == 0 and hh == 0) else f"a[{c}:{c+15}]"
                out.append(I(f"v_mfma_f32_32x32x16_bf16 a[{c}:{c+15}], v[{r}:{r+3}], v[{pb+4*hh}:{pb+4*hh+3}], {src}"))
        return out

    def init_max(t):
        b, l = SB + (t & 1) * 16, (vL0 if t < 16 else vL1)
        S(tile_max(t, vT0))
        S(f"v_mov_b32 v{vT1}, v{vT0}\nv_mov_b32 v{l}, 0\nv_permlane32_swap_b32 v{vT0}, v{vT1}\nv_max_f32 v{vT0}, v{vT0}, v{vT1}")
        for r in range(16):
            S(f"v_sub_f32 v{NM+r}, 0, v{vT0}\nv_sub_f32 v{b+r}, v{b+r}, v{vT0}")

    def check(t):
        n, l = len(stubs), (vL0 if t < 16 else vL1)
        if t & 15 == 0:
            S(f"v_add_f32 v{l}, v{l}, v{vTS}")
            return
        S(f"v_cmp_lt_f32 vcc, {f32(SUM_THR)}, v{vTS}\ns_cbranch_vccnz L_stub{n}\nL_back{n}:\nv_add_f32 v{l}, v{l}, v{vTS}")
        stubs.append((n, t >> 4, t & 1, (t & 15) != 15))

    def epilogue(task):
        l, ob = (vL0, vL1)[task], aO
        S(f"v_mov_b32 v{vT0}, v{l}\ns_nop 1\nv_permlane32_swap_b32 v{vT0}, v{l}\nv_add_f32 v{vT0}, v{vT0}, v{l}\nv_rcp_f32 v{vT0}, v{vT0}")
        S(f"v_mov_b32 v{vQ}, v{vT0}\nv_mov_b32 v{vQ+1}, v{vT0}")
        for uu in range(4):
            for a in range(2):
                tb = EPI + ((uu * 2 + a) & 1) * 12
                for j in range(8):
                    S(f"v_accvgpr_read_b32 v{tb + j}, a{ob + uu * 16 + a * 8 + j}")
                for j in range(0, 8, 2):
                    S(f"v_pk_mul_f32 v[{tb+j}:{tb+j+1}], v[{tb+j}:{tb+j+1}], v[{vQ}:{vQ+1}]")
                for j in range(4):
                    S(f"v_cvt_pk_bf16_f32 v{tb + 8 + j}, v{tb + 2*j}, v{tb + 2*j + 1}")
                S(I(f"buffer_store_dwordx4 v[{tb+8}:{tb+11}], v{vOO}, s[{S_O}:{S_O+3}], s{sOo + task * 2 + (uu >> 1)} offen "
                    f"offset:{(uu & 1) * 1024 + a * 512} {o.o_fl}", uO[task]))

    U = lambda k, t: ring.unit[(k, t)]
    depth = lambda t: max(o.depth_min, int(o.depth0 - o.depth_slope * t))
    S(Barrier(landed=[U("K", 0), U("K", 1)], release=[uQ]))
    ring.free += list(range(9, 20))
    S(ring.rK(0))
    S(ring.issue(depth=o.depth0, keep=min(2, ring.waiting())))
    S(qk(0))
    S(ring.rK(1))
    setup_o()
    init_max(0)
    for t in range(33):
        landed, release = [], []
        if 1 <= t: landed.append(("V", t - 1))
        if t + 2 < 32: landed.append(("K", t + 2))
        if t >= 2: release.append(("V", t - 2))
        if t == 0: release.append(("K", 0))
        if t + 1 < 32: release.append(("K", t + 1))
        S(Barrier(landed=[ring.unit[k] for k in landed] + ([uO[0]] if t == 20 else []), release=[ring.unit[k] for k in release]))
        ring.release(release)
        m1 = qk(t + 1) if t + 1 < 32 else []
        m2 = pv(t - 1) if t >= 1 else []
        n1, n = len(m1), len(m1) + len(m2)
        rv = ring.rV(t - 1) if t >= 1 else []
        rk = ring.rK(t + 2) if t + 2 < 32 else []
        sm = softmax(t) if t < 32 else []
        dp = ring.dump([("V", t), ("K", t + 3)])
        dm = ring.issue(depth=depth(t), keep=max(0, min(2, ring.waiting()) - 2), maxn=o.maxreq)
        for _ in range(list(o.wpre).count(t)):
            dm += gemm_o.dW()
        if t == 8: dm.append(fl.load(S_F, 0))
        if t == 12:
            dm.append(fl.check(S_F, 0, 1))
            dm.append([I(x) for x in (f"s_and_b32 s{sT0}, s2, 7", f"s_lshl_b32 s{sT0}, s{sT0}, 2", f"s_add_u32 s{sT0}, s{sT0}, s{sBP}",
                                      f"s_lshl_b32 s{sT0}, s{sT0}, 7", f"s_add_u32 s{sT0}, s{sT0}, {WS_FLAG}",
                                      f"s_add_u32 s{S_F}, s88, s{sT0}", f"s_addc_u32 s{S_F+1}, s89, 0", f"s_mov_b32 s{S_F+2}, 64")])
        if t == 20: dm.insert(0, fl.raise_(S_F, vFS1, 0))
        if t == 27: dm.append(fl.load(S_F, 0))
        if t == 31: dm.append(fl.check(S_F, 0, 8))
        if m1 and m2:
            S(weave(m1 + m2, [(rv, 0, n1 - 2), (dm, 1, n - 3), (sm, 0, n - 2), ([WaitAll(lgkm=0)], n1 - 1, n1 - 1), (rk, n1, n - 2), (dp, n1, n - 4)]))
        elif m1:
            S(weave(m1, [(dm, 0, n - 1), (sm, 0, n - 1)])); S(rk); S(dp)
        elif sm:
            S(rv[:8]); S(sm[:8]); S(rv[8:]); S(sm[8:16])
            S(weave(m2, [(dm, 0, n - 1), (sm[16:], 0, n - 2)]))
        else:
            S(rv); S(dm); S(m2)
        if o.fine and t % 2 == 1:
            stamp(S, o, 10 + t // 2)
        if t < 32:
            check(t)
        if t == 15:
            init_max(16)
        if t == 16:
            epilogue(0)
            stamp(S, o, 3)
    S(Barrier(release=[U("V", 31)]))
    for k in range(N_GW):
        if k < N_GX:
            S(gemm_o.dX())
        if gemm_o.w_next <= k + 1 and gemm_o.w_next < o.w_top:
            S(gemm_o.dW())
    epilogue(1)
    return uO[1]


def rare_paths(stubs):
    L, variants = [], {}
    for n, oset, par, fix in stubs:
        name = variants.setdefault((oset, par, fix), f"L_rare{oset}{par}{int(fix)}")
        L.append(f"L_stub{n}:\ns_call_b64 s[{sLink}:{sLink+1}], {name}\ns_branch L_back{n}")
    for (oset, par, fix), name in variants.items():
        l, ob, b, nb = (vL0, vL1)[oset], aO, SB + par * 16, SB + (1 - par) * 16
        L.append(f"{name}:\ns_nop 15")
        L += tile_max(par, vT0)
        L.append(f"v_mov_b32 v{vT1}, v{vT0}\ns_nop 1\nv_permlane32_swap_b32 v{vT0}, v{vT1}\ns_nop 1")
        L.append(f"v_max3_f32 v{vT0}, v{vT0}, v{vT1}, 0\nv_sub_f32 v{vF}, 0, v{vT0}\nv_exp_f32 v{vF}, v{vF}")
        for r in range(16):
            L.append(f"v_sub_f32 v{NM+r}, v{NM+r}, v{vT0}\nv_sub_f32 v{b+r}, v{b+r}, v{vT0}")
            if fix:
                L.append(f"v_sub_f32 v{nb+r}, v{nb+r}, v{vT0}")
        L.append(f"v_mul_f32 v{l}, v{vF}, v{l}")
        for r in range(64):
            L.append(f"v_accvgpr_read_b32 v{vT1}, a{ob + r}\nv_mul_f32 v{vT1}, v{vF}, v{vT1}\nv_accvgpr_write_b32 a{ob + r}, v{vT1}")
        for x in softmax(par):
            L.append(x.text + "\ns_nop 0")
        L.append(f"s_nop 3\ns_setpc_b64 s[{sLink}:{sLink+1}]")
    return "\n".join(L).split("\n")


class Flags:
    def __init__(self):
        self.spins = []

    def load(self, srdr, off):
        return [I(f"buffer_load_dword v{vPoll}, v{vFL}, s[{srdr}:{srdr+3}], 0 offen offset:{off} sc1", cost=3)]

    def check(self, srdr, off, n):
        k, mask = len(self.spins), (1 << n) - 1
        self.spins.append((k, srdr, off, mask))
        return [I(f"v_cmp_eq_u32 vcc, 1, v{vPoll}"), I(f"s_and_b32 s{sSpin}, vcc_lo, {mask}"), I(f"s_cmp_eq_u32 s{sSpin}, {mask}"),
                I(f"s_cbranch_scc0 L_spin{k}"), I(f"L_spun{k}:", cost=0)]

    def raise_(self, srdr, voff, off):
        return [I(f"buffer_store_dword v{vOne}, v{voff}, s[{srdr}:{srdr+3}], 0 offen offset:{off} sc1", cost=3)]

    def code(self):
        L = []
        for k, srdr, off, mask in self.spins:
            L.append(f"L_spin{k}:\ns_mov_b32 s{sSpin+1}, 0x100000\nL_spin{k}_l:")
            L.append(f"buffer_load_dword v{vPoll}, v{vFL}, s[{srdr}:{srdr+3}], 0 offen offset:{off} sc1\ns_waitcnt vmcnt(0)")
            L.append(f"v_cmp_eq_u32 vcc, 1, v{vPoll}\ns_nop 3\ns_and_b32 s{sSpin}, vcc_lo, {mask}\ns_cmp_eq_u32 s{sSpin}, {mask}")
            L.append(f"s_cbranch_scc1 L_spun{k}\ns_sleep 1\ns_sub_u32 s{sSpin+1}, s{sSpin+1}, 1\ns_cmp_lg_u32 s{sSpin+1}, 0")
            L.append(f"s_cbranch_scc1 L_spin{k}_l\ns_branch L_spun{k}")
        return "\n".join(L).split("\n")


class OProj:
    def __init__(self, S, o, fl):
        self.S, self.o, self.fl = S, o, fl
        a = o.lead
        self.steps = [(0, k) for k in range(a)]
        for k in range(16 - a):
            self.steps += [(1, k), (0, k + a)]
        self.steps += [(1, k) for k in range(16 - a, 16)]
        self.uX = [S.unit(f"gX{g}", (g % N_GX) * 16384, (g % N_GX + 1) * 16384) for g in range(32)]
        self.uW = [S.unit(f"gW{s}", L_GW + (s % N_GW) * 16384, L_GW + (s % N_GW + 1) * 16384) for s in range(16)]
        self.uP = [S.unit(f"P{p}", -10 - p, -9 - p) for p in range(2)]
        self.w_next = self.x_next = 0

    def stage(self, reg, k):
        return stage_index(reg, k, self.o.grp)

    def dW(self):
        s = self.w_next
        if s >= 16:
            return []
        self.w_next += 1
        u = self.uW[s]
        items = [self.stage(sWo, s) + [I(f"s_lshl_b32 s{sWo}, s{sWo}, 17")]]
        for p in range(4):
            grp = [I(f"s_add_u32 m0, s{sM_XB}, {u.lo}"), I("s_nop 0")] if p == 0 else []
            grp.append(I(f"buffer_load_dwordx4 v{vOW + p}, s[{S_W}:{S_W+3}], s{sWo} offen" + (f" offset:{1024 * p}" if p else "") + " lds", u, cost=3))
            items.append(grp)
        return items

    def dX(self):
        g = self.x_next
        if g >= 32:
            return []
        self.x_next += 1
        u = self.uX[g]
        p, k = self.steps[g]
        head = self.stage(sXo, k) + [I(f"s_mul_i32 s{sXo}, s{sXo}, 28672")]
        if p:
            head.append(I(f"s_add_u32 s{sXo}, s{sXo}, 14336"))
        items = [head]
        for p in range(4):
            grp = [I(f"s_add_u32 m0, s{sM_XB}, {u.lo}"), I("s_nop 0")] if p == 0 else []
            grp.append(I(f"buffer_load_dwordx4 v{vOX if p < 2 else vOX2}, s[{S_X}:{S_X+3}], s{sXo} offen"
                         + (f" offset:{1024 * p}" if p else "") + " sc1 lds", u, cost=3))
            items.append(grp)
        return items

    def rW(self, s):
        rel = self.uW[s].lo - L_GW
        out = []
        for ks in range(2):
            for i in range(2):
                a = 16 * s + (ks * 2 + i) * 4
                for h in range(2):
                    out.append(I(f"ds_read_b64_tr_b16 a[{a+2*h}:{a+2*h+1}], v{vGW + (rel >> 16) * 2 + i} "
                                 f"offset:{(rel & 0xffff) + ks * 8192 + h * 2048}", self.uW[s]))
        return out

    @staticmethod
    def xbuf(g, j):
        return GXF + ((7 * g + j) % NBUF) * 8

    def rX(self, g, j):
        r = self.xbuf(g, j)
        return [I(f"ds_read_b128 v[{r+4*ks}:{r+4*ks+3}], v{vGX} offset:{self.uX[g].lo + j * 2048 + ks * 1024}", self.uX[g]) for ks in range(2)]

    def mf(self, g):
        out, (p, s) = [], self.steps[g]
        for j in range(7):
            r = self.xbuf(g, j)
            for ks in range(2):
                for i in range(2):
                    c, a = GA + p * 56 + (i * 7 + j) * 4, 16 * s + (ks * 2 + i) * 4
                    src = "0" if (s == 0 and ks == 0) else f"v[{c}:{c+3}]"
                    out.append(I(f"v_mfma_f32_16x16x32_bf16 v[{c}:{c+3}], a[{a}:{a+3}], v[{r+4*ks}:{r+4*ks+3}], {src}"))
        return out

    def send(self, p):
        items = []
        b0, b1 = GA + p * 56, GA + p * 56 + 28
        for slot in (1, 0):
            for k in range(4):
                src = (b1 if slot else b0) + 8 * k
                dst = b1 + 8 * k + (0 if slot else (4 if k < 3 else 2))
                n = 4 if k < 3 else 2
                grp = [I(f"v_cvt_pk_bf16_f32 v{dst + e}, v{src + 2*e}, v{src + 2*e + 1}") for e in range(n)]
                va = ((vP4, vP2) if slot else (vP4s, vP2s))[k == 3]
                off = 1024 * k if k < 3 else 0
                st = I(f"buffer_store_dwordx{n} v[{dst}:{dst+n-1}], v{va}, s[{S_P}:{S_P+3}], s{sOo + slot} offen offset:{off} sc1", self.uP[p], cost=3)
                items += [[x] for x in grp] + [[st]]
        items.append([I(f"s_add_u32 s{sOo}, s{sOo}, {PART_PASS}"), I(f"s_add_u32 s{sOo+1}, s{sOo+1}, {PART_PASS}")])
        return items

    def blocks(self, p):
        return ([28 + 4 * k for k in range(7)] + [220 + 4 * k for k in range(5)]) if p == 0 else [GXF + 4 * k for k in range(12)]

    def fetch(self, p):
        items, blk = [], self.blocks(p)
        for d in range(3):
            items.append([I(f"s_add_u32 s{sOo+3}, s{sOo+2}, {p * PART_PASS + d * 7168}")])
            for k in range(4):
                r, n = blk[d * 4 + k], (4 if k < 3 else 2)
                if n == 2:
                    items.append([I(f"v_mov_b32 v{r+2}, 0"), I(f"v_mov_b32 v{r+3}, 0")])
                items.append([I(f"buffer_load_dwordx{n} v[{r}:{r+n-1}], v{vP4l if k < 3 else vP2l}, s[{S_P}:{S_P+3}], s{sOo+3} offen "
                                f"offset:{1024 * k if k < 3 else 0} sc1", cost=3)])
        return items

    def reduce(self, p):
        out, blk = [], self.blocks(p)
        for d in range(3):
            for j in range(7):
                r, c, sel = blk[d * 4 + j // 2], GA + p * 56 + j * 4, (vSel if j & 1 else vSel + 2)
                out.append(I(f"v_mfma_f32_16x16x32_bf16 v[{c}:{c+3}], v[{sel}:{sel+3}], v[{r}:{r+3}], v[{c}:{c+3}]"))
        return out

    def store_out(self, p):
        items = []
        fl = f" {self.o.out_fl}" if self.o.out_fl else ""
        for j in range(7):
            c = GA + p * 56 + j * 4
            items += [[I(f"v_cvt_pk_bf16_f32 v{c}, v{c}, v{c+1}")], [I(f"v_cvt_pk_bf16_f32 v{c+1}, v{c+2}, v{c+3}")],
                      [I(f"s_mov_b32 s{sT3}, {(p * 112 + j * 16) * 4096}"),
                       I(f"buffer_store_dwordx2 v[{c}:{c+1}], v{vOut}, s[{S_K}:{S_K+3}], s{sT3} offen{fl}", cost=3)]]
        return items

    def setup(self):
        S = Stream()
        S(f"s_lshl_b32 s{sT0}, s{sBr}, 2\ns_add_u32 s{sT0}, s{sT0}, s{sBP}\ns_lshl_b32 s{sT0}, s{sT0}, 3\ns_add_u32 s{sT0}, s{sT0}, s{sHH}")
        S(f"s_mul_i32 s{sT0}, s{sT0}, {2 * PART_PASS}\ns_add_u32 s{sT0}, s{sT0}, {WS_PART}")
        srd(S, S_P, 88, sT0, 2 * PART_PASS)
        S(f"s_lshr_b32 s{sT0}, s{sWave}, 1\ns_and_b32 s{sT1}, s{sWave}, 1\ns_mul_i32 s{sT1}, s{sT1}, 3584")
        for i in range(2):
            S(f"s_lshl_b32 s{sT2}, s{sT0}, 1\ns_add_u32 s{sT2}, s{sT2}, {i}\ns_xor_b32 s{sT3}, s{sT2}, s{sOct}\ns_mul_i32 s{sT3}, s{sT3}, {PART_DEST}")
            S(f"s_max_u32 s{sT2}, s{sT2}, 1\ns_sub_u32 s{sT2}, s{sT2}, 1\ns_mul_i32 s{sT2}, s{sT2}, 7168\ns_add_u32 s{sT3}, s{sT3}, s{sT2}")
            S(f"s_add_u32 s{sOo + i}, s{sT3}, s{sT1}")
        S(f"s_mul_i32 s{sT3}, s{sOct}, {PART_DEST}\ns_add_u32 s{sOo + 2}, s{sT3}, s{sT1}")
        S(f"s_cmp_eq_u32 s{sT0}, 0\ns_cselect_b32 s{sT2}, {OOB}, 0\ns_cselect_b32 s{sT3}, 0, {OOB}")
        S(f"v_lshlrev_b32 v{vP4}, 4, v{vLane}\nv_lshlrev_b32 v{vP2}, 3, v{vLane}\nv_add_u32 v{vP2}, 3072, v{vP2}")
        S(f"v_add_u32 v{vP4s}, s{sT2}, v{vP4}\nv_add_u32 v{vP2s}, s{sT2}, v{vP2}\nv_add_u32 v{vP4l}, s{sT3}, v{vP4}\nv_add_u32 v{vP2l}, s{sT3}, v{vP2}")
        srd(S, S_K, 84, None, 896 * 4096)
        S(f"s_mul_i32 s{sT0}, s{sBP}, {224 * 4096}\ns_lshl_b32 s{sT1}, s{sBr}, 11\ns_add_u32 s{sT0}, s{sT0}, s{sT1}")
        S(f"s_lshl_b32 s{sT1}, s{sHH}, 8\ns_add_u32 s{sT0}, s{sT0}, s{sT1}\ns_lshl_b32 s{sT1}, s{sOct}, 6\ns_add_u32 s{sT0}, s{sT0}, s{sT1}")
        S(f"s_and_b32 s{sT1}, s{sWave}, 1\ns_lshl_b32 s{sT1}, s{sT1}, 5\ns_add_u32 s{sT0}, s{sT0}, s{sT1}\ns_add_u32 s{sT0}, s{sT0}, s{sT3}")
        S(f"v_and_b32 v{vT1}, 15, v{vLane}\nv_lshrrev_b32 v{vT2}, 4, v{vLane}\nv_lshlrev_b32 v{vT3}, 3, v{vT2}")
        S(f"v_lshl_add_u32 v{vT3}, v{vT1}, 12, v{vT3}\nv_add_u32 v{vOut}, s{sT0}, v{vT3}")
        S(f"v_lshlrev_b32 v{vT2}, 2, v{vT2}\nv_sub_u32 v{vT1}, v{vT1}, v{vT2}\nv_mov_b32 v{vT2}, 0x3f80\nv_mov_b32 v{vT3}, 0x3f800000")
        for k in (0, 1, 4, 5):
            S(f"v_mov_b32 v{vSel + k}, 0")
        for k in range(2):
            S(f"v_cmp_eq_u32 vcc, {2 * k}, v{vT1}\nv_cndmask_b32 v{vSel + 2 + k}, v{vSel}, v{vT2}, vcc")
            S(f"v_cmp_eq_u32 vcc, {2 * k + 1}, v{vT1}\nv_cndmask_b32 v{vSel + 2 + k}, v{vSel + 2 + k}, v{vT3}, vcc")
        groups, it = [], S.items
        while it:
            n = 1
            while n < len(it) and (it[n].op in ("s_addc_u32", "s_cselect_b32")):
                n += 1
            groups.append(it[:n]); it = it[n:]
        return groups

    def run(self, uO1):
        S, o, fl, uX, uW, uP, steps = self.S, self.o, self.fl, self.uX, self.uW, self.uP, self.steps
        first_x1 = o.lead - N_GX
        done0 = max(g for g in range(32) if steps[g][0] == 0)
        newW = lambda g: steps[g][1] if g < 32 and steps[g][0] == 0 else None
        setup = self.setup()
        per = (len(setup) + 3) // 4
        S(Barrier(landed=[uX[0], uW[0]]))
        S(self.rW(0))
        for j in range(7):
            S(self.rX(0, j))
        w_read, w_rel = 0, 0
        for g in range(32):
            wn = newW(g + 1)
            landed = ([uX[g + 1]] if g + 1 < 32 else []) + ([uW[wn]] if wn is not None else [])
            post = []
            if g == o.g_f1b:
                landed.append(uO1); post = fl.raise_(S_F, vFS1, 32)
            if g == done0 + 4:
                landed.append(uP[0]); post = fl.raise_(S_F2, vFS2, 0)
            rel = [uX[g]]
            if w_read is not None:
                rel.append(uW[w_read])
            S(Barrier(landed=landed, release=rel))
            q, d = [], [post] if post else []
            if g == max(first_x1 - 1, o.g_f1b): d.append(fl.load(S_F, 32))
            w_rel += w_read is not None
            dw = []
            for _ in range(2):
                if self.w_next - w_rel < N_GW:
                    dw += self.dW()
            if g == first_x1:
                d += dw + [fl.check(S_F, 32, 8)] + self.dX()
            else:
                d += self.dX() + dw
            w_read = wn
            if g == done0 + 1: d += self.send(0)
            if g + 1 < 32:
                for j in range(7):
                    g0 = max(0, 4 * (j - 2) + 3)
                    q.append((self.rX(g + 1, j), g0, g0 + 1))
                if wn is not None:
                    q.append((self.rW(wn), 5, 19))
            q.append((d, 0 if g != done0 + 1 else 2, 25))
            if 10 <= g < 14:
                q.append((setup[(g - 10) * per:(g - 9) * per], 2, 26))
            S(weave(self.mf(g), q))
            if g == 15:
                stamp(S, o, 5)
            if o.fine2 and g % 2 == 1:
                stamp(S, o, 10 + g // 2)
        stamp(S, o, 6)
        S(fl.load(S_F2, 0))
        S(self.send(1))
        S(fl.check(S_F2, 0, 4))
        S(self.fetch(0))
        S(Barrier(landed=[uP[1]]))
        S(fl.raise_(S_F2, vFS2, 16))
        S(self.reduce(0))
        S(fl.load(S_F2, 16))
        S(self.store_out(0))
        S(fl.check(S_F2, 16, 4))
        stamp(S, o, 7)
        S(self.fetch(1))
        S(self.reduce(1))
        S(self.store_out(1))


def kernel(o, code_bytes):
    S = Stream()
    header(S, o, code_bytes)
    gemm_dma_addresses(S, "q")
    rot_base(S, o.qgrp)
    select_pointers(S, o)
    S(f"s_mul_i32 s{sT0}, s{sBP}, 458752"); srd(S, S_X, 64, sT0, 458752)
    S(f"s_lshl_b32 s{sT1}, s{sOct}, 3\ns_add_u32 s{sT1}, s{sT1}, s{sHH}")
    S(f"s_lshl_b32 s{sT0}, s{sT1}, 8"); srd(S, S_W, 70, sT0, 8388608 - 31 * 256)
    gq = Gemm(S, o, "q")
    gq.start()
    S(f"s_lshl_b32 s{sT0}, s{sBP}, 6\ns_add_u32 s{sT0}, s{sT0}, s{sT1}\ns_lshl_b32 s{sT0}, s{sT0}, 17")
    srd(S, S_K, 66, sT0, 4194304 + 131072); srd(S, S_V, 68, sT0, 4194304 + 131072)
    S(f"s_cmp_lg_u32 s2, 0\ns_cbranch_scc1 L_noclear")
    S(f"s_mov_b32 s{sT0}, {WS_FLAG}"); srd(S, S_F, 88, sT0, 96 * 128)
    S(f"v_lshlrev_b32 v{vT0}, 4, v{vLane}\nv_add_u32 v{vT0}, s{sM_XA}, v{vT0}")
    for k in range(4):
        S(f"v_mov_b32 v{vQ + k}, 0")
    for k in range(3):
        S(f"buffer_store_dwordx4 v[{vQ}:{vQ+3}], v{vT0}, s[{S_F}:{S_F+3}], 0 offen offset:{1024 * k} sc1")
        S.items[-1].kind = "ctl"
    S("s_nop 1\nL_noclear:")
    srd(S, S_F, 86, None, 4)
    gemm_read_addresses(S, "q")
    kv_addresses(S)
    ring = Ring(S, o)
    gq.loop(lambda s: ring.prefetch(list(o.pre_stages).count(s)))
    S(ring.prefetch(99))
    stamp(S, o, 1)
    S(f"s_or_b32 s{sT0}, s2, s{sWave}\ns_cmp_lg_u32 s{sT0}, 0\ns_cbranch_scc1 L_noready\nv_mov_b32 v{vT0}, 1")
    S(f"buffer_store_dword v{vT0}, off, s[{S_F}:{S_F+3}], 0 sc1")
    S.items[-1].kind = "ctl"
    S("L_noready:")
    uQ = q_exchange(S)
    stamp(S, o, 2)
    fl = Flags()

    def setup_o():
        S(f"s_and_b32 s{sT0}, s2, 7\ns_lshl_b32 s{sT0}, s{sT0}, 2\ns_add_u32 s{sT0}, s{sT0}, s{sBP}\ns_mul_i32 s{sT0}, s{sT0}, {O_GROUP}")
        srd(S, S_X, 88, sT0, O_GROUP)
        S(f"s_mul_i32 s{sT1}, s{sHH}, 57344\ns_add_u32 s{sT0}, s{sT0}, s{sT1}")
        srd(S, S_O, 88, sT0, 57344)
        S(f"s_lshl_b32 s{sT0}, s{sOct}, 21\ns_lshl_b32 s{sT1}, s{sHH}, 8\ns_add_u32 s{sT0}, s{sT0}, s{sT1}")
        srd(S, S_W, 72, sT0, 2097152 - 7 * 256)
        rot_base(S, o.grp)
        S(f"s_lshl_b32 s{sT0}, s{sBr}, 2\ns_add_u32 s{sT0}, s{sT0}, s{sBP}\ns_lshl_b32 s{sT0}, s{sT0}, 3\ns_add_u32 s{sT0}, s{sT0}, s{sHH}")
        S(f"s_add_u32 s{sT0}, s{sT0}, 32\ns_lshl_b32 s{sT0}, s{sT0}, 7\ns_add_u32 s{sT0}, s{sT0}, {WS_FLAG}")
        srd(S, S_F2, 88, sT0, 32)
        gemm_dma_addresses(S, "o")
        gemm_read_addresses(S, "o")
        S(f"v_lshlrev_b32 v{vFL}, 2, v{vLane}\nv_mov_b32 v{vOne}, 1\nv_or_b32 v{vT0}, s{sWave}, v{vLane}\nv_mov_b32 v{vT1}, {OOB}")
        S(f"s_lshl_b32 s{sT0}, s{sHH}, 2\ns_lshl_b32 s{sT1}, s{sOct}, 2\nv_mov_b32 v{vT2}, s{sT0}\nv_mov_b32 v{vT3}, s{sT1}")
        S(f"v_cmp_eq_u32 vcc, 0, v{vT0}\nv_cndmask_b32 v{vFS1}, v{vT1}, v{vT2}, vcc\nv_cndmask_b32 v{vFS2}, v{vT1}, v{vT3}, vcc")

    go = OProj(S, o, fl)
    stubs = []
    uO1 = attention(S, o, ring, uQ, stubs, setup_o, go, fl)
    stamp(S, o, 4)
    go.run(uO1)
    if o.stamps:
        S(WaitAll(vm=0))
    stamp(S, o, 8)
    stamp(S, o, 33, True)
    body = S.finalize(True) + ["L_end:", "s_endpgm"]
    return body, fl.code() + rare_paths(stubs)


def descriptor(name, vgpr=512, accum=256):
    return (f".amdhsa_kernel {name}\n  .amdhsa_next_free_vgpr {vgpr}\n  .amdhsa_next_free_sgpr 102\n"
            f"  .amdhsa_accum_offset {accum}\n  .amdhsa_group_segment_fixed_size 0\n  .amdhsa_kernarg_size 104\n"
            "  .amdhsa_user_sgpr_count 2\n  .amdhsa_user_sgpr_kernarg_segment_ptr 1\n"
            "  .amdhsa_system_sgpr_workgroup_id_x 1\n  .amdhsa_float_denorm_mode_32 3\n.end_amdhsa_kernel\n")


def wrap(body, rare):
    ref = open(f"cdna_kernels/{NAME}.s.ref").read().split("\n")
    head = [l for l in ref[:ref.index(".text")] if l.startswith(";") and "@launch" not in l and "Override" not in l and "grid=ceil" not in l]
    k = NAME + "_kernel"
    out = head + ["; @launch grid=(256,1,1) block=(256,1,1) lds=163840", '.amdgcn_target "amdgcn-amd-amdhsa--gfx950"', ".text",
                  f".globl {k}", ".p2align 8", f".type {k},@function", f"{k}:"]
    out += [l if l.endswith(":") else "    " + l for l in body + rare]
    out += ['.section .rodata,"a"', ".p2align 6", descriptor(k)]
    return "\n".join(out)


def text_size(asm):
    import subprocess
    open("_sz.s", "w").write(asm)
    subprocess.run(["clang", "-x", "assembler", "-target", "amdgcn-amd-amdhsa", "-mcpu=gfx950", "-c",
                    "_sz.s", "-o", "_sz.o"], check=True)
    r = subprocess.run(["llvm-readelf", "-s", "_sz.o"], capture_output=True, text=True).stdout
    return int(re.search(r"\s([0-9a-f]{16})\s.*\sL_end\n", r).group(1), 16)


def build(o):
    def once(nb):
        body, rare = kernel(o, nb)
        if o.drop:
            body = [l for l in body if not any(re.search(p, l) for p in o.drop)]
        return wrap(body, rare)
    nb = text_size(once(0)) // 64 * 64
    print("main code bytes", nb)
    return once(nb)


if __name__ == "__main__":
    o = Opt()
    path = f"cdna_kernels/{NAME}.s"
    for a in sys.argv[1:]:
        k, v = a.split("=", 1)
        if k == "out":
            path = v
        else:
            setattr(o, k, eval(v))
    open(path, "w").write(build(o))
    print("wrote", path)
```
